```python
import torch

def _softmax(x, axis=-1):
    return torch.softmax(x, dim=axis)
def _gelu(x):
    return torch.nn.functional.gelu(x, approximate="tanh")
def _silu(x):
    return torch.nn.functional.silu(x)
def _sigmoid(x):
    return torch.sigmoid(x)
def _layernorm(x, axis=-1, eps=1e-5):
    m = x.mean(dim=axis, keepdim=True)
    v = x.var(dim=axis, keepdim=True, unbiased=False)
    return (x - m) / torch.sqrt(v + eps)
def _scatter_add(tgt, idx, src, axis=0):
    return tgt.clone().index_add_(axis, idx, src)
def _segment_sum(src, seg, n):
    out = torch.zeros((n,) + src.shape[1:], dtype=src.dtype)
    return out.index_add_(0, seg, src)
def _pad(x, pw):
    flat = tuple(v for pair in reversed(pw) for v in pair)
    return torch.nn.functional.pad(x, flat)

kernel_name = 'sequential_preLN__grouped_kv_mqa__glu_gated_bilinear__prompt'

def setup_inputs():

    _w = (lambda a: (lambda t: t.to(torch.bfloat16) if t.is_floating_point() else t)(torch.as_tensor(a)))
    def _A_setup():
        B, S, D, H = 1, 2048, 640, 32
        Dh = D // H
        return {
            "x": _w((lambda *s: torch.randn(*s, dtype=torch.bfloat16) * 0.05)(B, S, D)),
            "wq": _w((lambda *s: torch.randn(*s, dtype=torch.bfloat16) * 0.05)(D, H * Dh)),
            "wk": _w((lambda *s: torch.randn(*s, dtype=torch.bfloat16) * 0.05)(D, Dh)),
            "wv": _w((lambda *s: torch.randn(*s, dtype=torch.bfloat16) * 0.05)(D, Dh)),
            "wo": _w((lambda *s: torch.randn(*s, dtype=torch.bfloat16) * 0.05)(H * Dh, D)),
        }
    _A_in = _A_setup()

    def _B_setup():
        B, S, D, F = 1, 2048, 640, 1728
        return {
            "x": _w((lambda *s: torch.randn(*s, dtype=torch.bfloat16) * 0.05)(B, S, D)),
            "w_gate": _w((lambda *s: torch.randn(*s, dtype=torch.bfloat16) * 0.8)(D, F) * (D ** -0.5)),
            "w_up": _w((lambda *s: torch.randn(*s, dtype=torch.bfloat16) * 0.8)(D, F) * (D ** -0.5)),
            "w_down": _w((lambda *s: torch.randn(*s, dtype=torch.bfloat16) * 0.8)(F, D) * (F ** -0.5)),
        }
    _B_in = _B_setup()

    return {
        "A_x": _A_in["x"],
        "A_wq": _A_in["wq"],
        "A_wk": _A_in["wk"],
        "A_wv": _A_in["wv"],
        "A_wo": _A_in["wo"],
        "B_x": _B_in["x"],
        "B_w_gate": _B_in["w_gate"],
        "B_w_up": _B_in["w_up"],
        "B_w_down": _B_in["w_down"],
    }

def reference(A_x, A_wq, A_wk, A_wv, A_wo, B_x, B_w_gate, B_w_up, B_w_down):
    def _A_ref(x, wq, wk, wv, wo):
        B, S, D = x.shape
        H = 32
        Dh = D // H
        q = (lambda x, *d: x.permute(*d))((x @ wq).reshape(B, S, H, Dh), 0, 2, 1, 3)
        k = x @ wk
        v = x @ wv
        scores = torch.einsum("bhqd,bkd->bhqk", q, k) * (Dh ** -0.5)
        p = _softmax(scores, axis=-1)
        o = torch.einsum("bhqk,bkd->bhqd", p, v)
        return (lambda x, *d: x.permute(*d))(o, 0, 2, 1, 3).reshape(B, S, H * Dh) @ wo

    def _B_ref(x, w_gate, w_up, w_down):
        g = torch.einsum("bsd,df->bsf", x, w_gate)
        u = torch.einsum("bsd,df->bsf", x, w_up)
        h = g * u
        return torch.einsum("bsf,fd->bsd", h, w_down)

    x = A_x
    h = x + _A_ref(_layernorm(x, axis=-1), A_wq, A_wk, A_wv, A_wo)
    h2 = h + _B_ref(_layernorm(h, axis=-1), B_w_gate, B_w_up, B_w_down)
    return h2
```

```python
from gen_common import *

NPK = 56
NCS = 54
NWG = 256 + NCS + NPK
def attn(name, THR=40.0):
    k = Asm(name)
    sQ, sKV, sO, sC, sWt = 4, 8, 12, 16, 20
    sW, sT, sCnt, soff, sm = 24, 33, 25, 26, 27
    pWS, pG, pU = 40, 42, 44
    vLane, vHf, vT = 1, 2, 96
    Q0, Q1, SA_, SB_, P, O, KF, VF = 4, 8, 16, 32, 48, 64, 80, 88
    vCur, vNxt, vDma, vOo = 12, 13, 14, 15
    NV = 112
    lcs = k.lab("Lcs"); lend = f"L_{name}_end"
    k(f"s_cmp_ge_u32 s2, {NWG}\ns_cbranch_scc1 {lend}")
    k.stamp(0)
    k.ldptr(pWS, 'ws'); k.ldptr(pG, 'wg'); k.ldptr(pU, 'wu')
    k(f"""v_and_b32 v{vLane}, 63, v0
    v_lshrrev_b32 v{vT}, 6, v0
    v_lshrrev_b32 v{vHf}, 5, v{vLane}
    v_readfirstlane_b32 s{sW}, v{vT}
    s_cmp_ge_u32 s2, 256
    s_cbranch_scc1 {lcs}
    s_setprio 3
    s_waitcnt lgkmcnt(0)""")
    k.srd(sQ, pWS, ACT_BYTES, WS_Q); k.srd(sKV, pWS, 0x40000, WS_KV); k.srd(sO, pWS, ACT_BYTES, WS_O)
    k.srd(sC, pWS, 512, WS_KMAX)
    k(f"""s_and_b32 s{sT}, s2, 7
    s_lshl_b32 s{sT}, s{sT}, 5
    s_lshr_b32 s{sT+1}, s2, 3
    s_add_u32 s{sT}, s{sT}, s{sT+1}
    s_lshl_b32 s{sT}, s{sT}, 3
    s_add_u32 s{sT}, s{sT}, s{sW}
    s_mul_i32 s{sT}, s{sT}, 1280
    v_and_b32 v{vT}, 31, v{vLane}
    v_mul_u32_u24 v{vT}, 40, v{vT}
    v_add_u32 v{vOo}, s{sT}, v{vT}
    v_lshl_add_u32 v{vT+1}, v{vHf}, 4, v{vOo}
    buffer_load_dwordx4 {vr(Q0,4)}, v{vT+1}, s[{sQ}:{sQ+3}], 0 offen
    v_lshl_add_u32 v{vT+2}, v{vHf}, 30, v{vOo}
    buffer_load_dwordx2 {vr(Q1,2)}, v{vT+2}, s[{sQ}:{sQ+3}], 0 offen offset:32
    v_lshlrev_b32 v{vT+3}, 2, v{vLane}
    buffer_load_dword v{vT+4}, v{vT+3}, s[{sC}:{sC+3}], 0 offen
    buffer_load_dword v{vT+5}, v{vT+3}, s[{sC}:{sC+3}], 0 offen offset:256
    v_lshlrev_b32 v{vCur}, 4, v{vLane}
    s_lshl_b32 s{sm}, s{sW}, 11
    v_add_u32 v{vDma}, s{sm}, v{vCur}
    v_add_u32 v{vNxt}, 16384, v{vCur}""")
    def dma(slot_expr_imm=None):
        pass
    for c in range(3):
        k(f"""s_mov_b32 s{soff}, {c*16384}
        s_add_u32 m0, s{sm}, {c*16384}
        s_nop 0
        buffer_load_dwordx4 v{vDma}, s[{sKV}:{sKV+3}], s{soff} offen lds
        s_add_u32 m0, s{sm}, {c*16384+1024}
        s_nop 0
        buffer_load_dwordx4 v{vDma}, s[{sKV}:{sKV+3}], s{soff} offen offset:1024 lds""".replace(f"s_add_u32 m0, s{sm}, {c*16384+1024}", f"s_add_u32 m0, s{sm}, {c*16384}"))
    for i in range(16): k(f"v_mov_b32 v{O+i}, 0")
    k.stamp(1)
    k(f"v_mov_b32 v{Q1+2}, 0\nv_mov_b32 v{Q1+3}, 0\ns_waitcnt vmcnt(6)")
    k.stamp(2)
    for r in (vT + 4, vT + 5):
        for sh in (8, 4, 2, 1):
            k(f"s_nop 1\nv_max_f32_dpp v{r}, v{r}, v{r} row_ror:{sh} row_mask:0xf bank_mask:0xf")
        k.xsum(r, vT + 6, vT + 7, "v_max_f32")
    k(f"""v_add_f32 v{vT+4}, v{vT+4}, v{vT+5}
    v_mov_b32 v{vT+5}, 0""")
    for r in (Q0, Q0 + 1, Q0 + 2, Q0 + 3, Q1, Q1 + 1):
        k(f"v_dot2_f32_bf16 v{vT+5}, v{r}, v{r}, v{vT+5}")
    k(f"""s_nop 3
    v_mov_b32 v{vT+6}, v{vT+5}
    v_mov_b32 v{vT+7}, v{vT+5}
    s_nop 1
    v_permlane32_swap_b32 v{vT+6}, v{vT+7}
    s_nop 1
    v_add_f32 v{vT+5}, v{vT+6}, v{vT+7}
    v_mul_f32 v{vT+5}, v{vT+5}, v{vT+4}
    v_sqrt_f32 v{vT+5}, v{vT+5}
    s_nop 0
    v_mul_f32 v{vT+5}, {f2h(1.01)}, v{vT+5}
    v_mov_b32 v{vT+6}, {f2h(THR)}
    v_cmp_nle_f32 vcc, v{vT+5}, v{vT+6}""")
    lfast = k.lab("Lfast"); lmx = k.lab("Lmx")
    k(f"s_cbranch_vccz {lfast}")
    k(f"""v_mov_b32 v{vT+5}, 0xff800000
    s_mov_b32 s{sCnt}, 0
    {lmx}:
    buffer_load_dwordx4 {vr(KF,4)}, v{vCur}, s[{sKV}:{sKV+3}], s{sCnt} offen
    buffer_load_dwordx4 {vr(KF+4,4)}, v{vCur}, s[{sKV}:{sKV+3}], s{sCnt} offen offset:1024
    s_waitcnt vmcnt(0)
    {mfma32(SA_, KF, Q0)}
    {mfma32(SA_, KF+4, Q1, SA_)}
    s_nop 15
    s_nop 3""")
    for i in range(0, 16, 2):
        k(f"v_max3_f32 v{vT+5}, v{SA_+i}, v{SA_+i+1}, v{vT+5}")
    k(f"""s_add_u32 s{sCnt}, s{sCnt}, 4096
    s_cmp_lt_u32 s{sCnt}, 0x40000
    s_cbranch_scc1 {lmx}
    v_mov_b32 v{vT+6}, v{vT+5}
    v_mov_b32 v{vT+7}, v{vT+5}
    s_nop 1
    v_permlane32_swap_b32 v{vT+6}, v{vT+7}
    s_nop 1
    v_max_f32 v{vT+5}, v{vT+6}, v{vT+7}
    {lfast}:""")
    k(f"""v_sub_f32 v{vT+5}, 0, v{vT+5}
    v_cvt_pk_bf16_f32 v{vT+6}, v{vT+5}, v{vT+5}
    v_lshlrev_b32 v{vT+6}, 16, v{vT+6}
    v_sub_f32 v{vT+5}, v{vT+5}, v{vT+6}
    v_cvt_pk_bf16_f32 v{vT+7}, v{vT+5}, v{vT+5}
    v_lshlrev_b32 v{vT+7}, 16, v{vT+7}
    v_sub_f32 v{vT+5}, v{vT+5}, v{vT+7}
    v_cvt_pk_bf16_f32 v{vT+6}, v{vT+6}, v{vT+7}
    v_cvt_pk_bf16_f32 v{vT+7}, v{vT+5}, 0
    v_cmp_eq_u32 vcc, 0, v{vHf}
    s_nop 1
    v_cndmask_b32 v{Q1+2}, 0, v{vT+6}, vcc
    v_cndmask_b32 v{Q1+3}, 0, v{vT+7}, vcc
    s_waitcnt vmcnt(2)
    s_barrier
    ds_read_b128 {vr(KF,4)}, v{vCur}
    ds_read_b128 {vr(KF+4,4)}, v{vCur} offset:1024
    s_waitcnt lgkmcnt(0)
    {mfma32(SA_, KF, Q0)}
    {mfma32(SA_, KF+4, Q1, SA_)}
    ds_read_b128 {vr(KF,4)}, v{vCur} offset:4096
    ds_read_b128 {vr(KF+4,4)}, v{vCur} offset:5120
    ds_read_b128 {vr(VF+4,4)}, v{vCur} offset:3072
    ds_read_b128 {vr(VF,4)}, v{vCur} offset:2048
    v_mov_b32 v{P+4}, 0
    v_mov_b32 v{P+5}, 0
    v_mov_b32 v{P+6}, 0
    v_mov_b32 v{P+7}, 0
    s_mov_b32 s{sCnt}, 0
    s_mov_b32 s{soff}, {3*16384}
    s_nop 7""")
    k.stamp(3)
    lloop = k.lab("Lloop")
    k(f".p2align 6\n{lloop}:")
    k(f"""s_and_b32 s{sT}, s{soff}, 0xffff
    s_add_u32 m0, s{sT}, s{sm}
    s_nop 0
    buffer_load_dwordx4 v{vDma}, s[{sKV}:{sKV+3}], s{soff} offen lds
    buffer_load_dwordx4 v{vDma}, s[{sKV}:{sKV+3}], s{soff} offen offset:1024 lds
    s_add_u32 s{soff}, s{soff}, 16384""")
    for i in range(4):
        S, SN = (SA_, SB_) if i % 2 == 0 else (SB_, SA_)
        def addr(tile, off):
            return (f"v{vCur} offset:{tile*4096+off}" if tile < 4 else f"v{vNxt} offset:{(tile-4)*4096+off}")
        e = lambda r: f"v_exp_f32 v{S+r}, v{S+r}"
        c = lambda j: f"v_cvt_pk_bf16_f32 v{P+j}, v{S+2*j}, v{S+2*j+1}"
        import os
        V = os.environ.get('AV', '5')
        M1, M2, M3, M4 = mfma32(SN, KF, Q0), mfma32(SN, KF+4, Q1, SN), mfma32(O, VF, P, O), mfma32(O, VF+4, P+4, O)
        RK = f"ds_read_b128 {vr(KF,4)}, {addr(i+2, 0)}\nds_read_b128 {vr(KF+4,4)}, {addr(i+2, 1024)}"
        RV0, RV1 = f"ds_read_b128 {vr(VF,4)}, {addr(i+1, 2048)}", f"ds_read_b128 {vr(VF+4,4)}, {addr(i+1, 3072)}"
        W2 = "s_waitcnt lgkmcnt(2)"
        if V == '0':
            seq = [W2, M1, e(0), e(1), M2, RK] + [e(j) for j in range(2, 9)] + [c(0), e(9), c(1), e(10), c(2), e(11), c(3), e(12), e(13), W2, M3, e(14), e(15), c(4), c(5), c(6), c(7), RV0, "s_nop 0", M4, RV1]
        elif V in ('1', '3'):
            seq = [W2, M1, e(0), e(1), e(2), e(3), M2, RK] + [e(j) for j in range(4, 9)] + [c(0), e(9), c(1), e(10), c(2), e(11), c(3), e(12), W2, M3, e(13), e(14), e(15), c(4), c(5), c(6), c(7), RV0, "s_nop 0", M4, RV1]
        elif V == '2':
            seq = [W2, M1, e(0), e(1), e(2), e(3), M2, RK, e(4), e(5), e(6), e(7), c(0), c(1), c(2), c(3), e(8), W2, M3, e(9), e(10), e(11), e(12), e(13), e(14), e(15), c(4), c(5), c(6), c(7), RV0, "s_nop 0", M4, RV1]
        elif V in ('4', '5'):
            RV1c = f"ds_read_b128 {vr(VF+4,4)}, {addr(i, 3072)}"
            if V == '4':
                seq = [W2, M1, e(0), e(1), e(2), e(3), M2, RK, e(4), e(5), "s_waitcnt lgkmcnt(3)", M4, RV1c, e(6), e(7), c(0), c(1), c(2), c(3), e(8), "s_waitcnt lgkmcnt(3)", M3, RV0] + [e(j) for j in range(9, 16)] + [c(4), c(5), c(6), c(7)]
            else:
                seq = [W2, M1, e(0), e(1), e(2), e(3), M2, RK, e(4), e(5), e(6), e(7), "s_waitcnt lgkmcnt(3)", M4, RV1c, c(0), c(1), c(2), c(3), e(8), e(9), e(10), "s_waitcnt lgkmcnt(3)", M3, RV0] + [e(j) for j in range(11, 16)] + [c(4), c(5), c(6), c(7)]
        if V == '3':
            seq = [x if not x.startswith('v_mfma') else "s_setprio 1\n" + x + "\ns_setprio 0" for x in seq]
        k("\n".join(seq))
    k(f"""v_mov_b32 v{vCur}, v{vNxt}
    v_add_u32 v{vNxt}, 16384, v{vNxt}
    v_and_b32 v{vNxt}, 0xffff, v{vNxt}
    s_add_u32 s{sCnt}, s{sCnt}, 1
    s_cmp_lt_u32 s{sCnt}, 16
    s_waitcnt vmcnt(2)
    s_barrier
    s_cbranch_scc1 {lloop}""")
    k.stamp(4)
    import os
    if os.environ.get('AV', '5') in ('4', '5'): k("s_waitcnt lgkmcnt(0)\n" + mfma32(O, VF+4, P+4, O) + "\ns_nop 15\ns_nop 3")
    k(f"""s_waitcnt lgkmcnt(0)
    s_nop 15
    v_mov_b32 v{vT}, v{O+8}
    v_mov_b32 v{vT+1}, v{O+8}
    s_nop 1
    v_permlane32_swap_b32 v{vT}, v{vT+1}
    s_nop 1
    v_rcp_f32 v{vT+1}, v{vT+1}
    s_nop 0""")
    for r in range(12): k(f"v_mul_f32 v{O+r}, v{O+r}, v{vT+1}")
    for j in range(6): k(f"v_cvt_pk_bf16_f32 v{O+j}, v{O+2*j}, v{O+2*j+1}")
    k(f"""v_lshl_add_u32 v{vT+2}, v{vHf}, 3, v{vOo}
    v_lshl_add_u32 v{vT+3}, v{vHf}, 30, v{vOo}
    buffer_store_dwordx2 {vr(O,2)}, v{vT+2}, s[{sO}:{sO+3}], 0 offen
    buffer_store_dwordx2 {vr(O+2,2)}, v{vT+2}, s[{sO}:{sO+3}], 0 offen offset:16
    buffer_store_dwordx2 {vr(O+4,2)}, v{vT+3}, s[{sO}:{sO+3}], 0 offen offset:32""")
    k.stamp(5); k.stamp(6); k.dump(pWS, sW, 1, 7)
    k("s_endpgm")
    lpk = k.lab("Lpk")
    k(f"""{lcs}:
    s_cmp_ge_u32 s2, {256+NCS}
    s_cbranch_scc1 {lpk}
    s_sub_u32 s{sT}, s2, 256
    s_waitcnt lgkmcnt(0)
    s_cmp_ge_u32 s{sT}, 27
    s_cselect_b32 s{sWt}, s{pU}, s{pG}
    s_cselect_b32 s{sWt+1}, s{pU+1}, s{pG+1}
    s_mov_b32 s{sWt+2}, {640*3456}
    s_mov_b32 s{sWt+3}, 0x20000
    s_cselect_b32 s{sT+1}, 27, 0
    s_sub_u32 s{sT+2}, s{sT}, s{sT+1}
    s_lshl_b32 s{sT+2}, s{sT+2}, 7
    s_mul_i32 s{sT+1}, s{sW}, {80*3456}
    s_add_u32 s{sT+2}, s{sT+2}, s{sT+1}
    v_lshrrev_b32 v{vT}, 3, v{vLane}
    v_mul_u32_u24 v{vT}, 3456, v{vT}
    v_and_b32 v{vT+1}, 7, v{vLane}
    v_lshlrev_b32 v{vT+1}, 4, v{vT+1}
    v_add3_u32 v{vT}, v{vT}, v{vT+1}, s{sT+2}""")
    k.srd(sC, pWS, 3456 * 4, WS_CS)
    for i in range(8): k(f"v_mov_b32 v{vT+4+i}, 0")
    for i in range(10):
        k(f"s_mov_b32 s{soff}, {i*8*3456}\nbuffer_load_dwordx4 {vr(4+4*i,4)}, v{vT}, s[{sWt}:{sWt+3}], s{soff} offen")
    for i in range(10):
        k(f"s_waitcnt vmcnt({9-i})")
        for d in range(4):
            r = 4 + 4 * i + d
            k(f"v_lshlrev_b32 v{vT+2}, 16, v{r}\nv_and_b32 v{vT+3}, 0xffff0000, v{r}\nv_add_f32 v{vT+4+2*d}, v{vT+4+2*d}, v{vT+2}\nv_add_f32 v{vT+5+2*d}, v{vT+5+2*d}, v{vT+3}")
    for i in range(8):
        r = vT + 4 + i
        k(f"s_nop 1\nv_add_f32_dpp v{r}, v{r}, v{r} row_ror:8 row_mask:0xf bank_mask:0xf")
        k.xsum(r, 4, 5)
    k(f"""s_lshl_b32 s{sT+1}, s{sW}, 8
    v_lshlrev_b32 v4, 5, v{vLane}
    v_add_u32 v4, s{sT+1}, v4
    v_cmp_gt_u32 vcc, 8, v{vLane}
    s_and_saveexec_b64 s[52:53], vcc
    ds_write_b128 v4, {vr(vT+4,4)}
    ds_write_b128 v4, {vr(vT+8,4)} offset:16
    s_mov_b64 exec, s[52:53]
    s_waitcnt lgkmcnt(0)
    s_barrier
    s_cmp_lg_u32 s{sW}, 0
    s_cbranch_scc1 {lend}
    v_lshlrev_b32 v4, 2, v{vLane}""")
    for w in range(8): k(f"ds_read_b32 v{8+w}, v4 offset:{w*256}")
    k("s_waitcnt lgkmcnt(0)")
    for w in range(1, 8): k(f"v_add_f32 v8, v8, v{8+w}")
    k(f"""s_lshl_b32 s{sT}, s{sT}, 8
    v_add_u32 v4, s{sT}, v4
    buffer_store_dword v8, v4, s[{sC}:{sC+3}], 0 offen
    s_endpgm""")
    pO, pD = 46, 48
    V64, V128, DT, vL16 = 4, 9, 16, 44
    sId, sj, sst, sw4, sBase, sDst = 28, 29, 30, 31, 34, 35
    k(f"{lpk}:")
    k.ldptr(pO, 'wo'); k.ldptr(pD, 'wd')
    wofs(k, V64, vLane, vT, sT, 5, 10, 6554, 1280, "0")
    wofs(k, V128, vLane, vT, sT, 7, 14, 4682, 3456, "0")
    k(f"""v_lshlrev_b32 v{vL16}, 4, v{vLane}
    s_sub_u32 s{sId}, s2, {256+NCS}
    s_lshl_b32 s{sId}, s{sId}, 3
    s_add_u32 s{sId}, s{sId}, s{sW}
    s_waitcnt lgkmcnt(0)""")
    k.srd(sO, pWS, 0x1000000, WS_PWO)
    lloop, lnext, lwd, lgu, l64 = k.lab(), k.lab(), k.lab(), k.lab(), k.lab()
    k(f"""{lloop}:
    s_and_b32 s{sw4}, s{sId}, 3
    s_cmp_ge_u32 s{sId}, 768
    s_cbranch_scc1 {lgu}
    s_cmp_ge_u32 s{sId}, 256
    s_cbranch_scc1 {lwd}
    s_bfe_u32 s{sst}, s{sId}, 0x30002
    s_lshr_b32 s{sj}, s{sId}, 5
    s_cmp_ge_u32 s{sst}, 5
    s_cbranch_scc1 {lnext}
    s_mul_i32 s{sDst}, s{sj}, 5
    s_add_u32 s{sDst}, s{sDst}, s{sst}
    s_mul_i32 s{sDst}, s{sDst}, 20480""")
    k.srd(sWt, pO, 640 * 1280)
    k(f"""s_branch {l64}
    {lwd}:
    s_sub_u32 s{sT}, s{sId}, 256
    s_bfe_u32 s{sst}, s{sT}, 0x40002
    s_lshr_b32 s{sj}, s{sT}, 6
    s_cmp_ge_u32 s{sst}, 14
    s_cbranch_scc1 {lnext}
    s_mul_i32 s{sDst}, s{sj}, 14
    s_add_u32 s{sDst}, s{sDst}, s{sst}
    s_mul_i32 s{sDst}, s{sDst}, 20480
    s_add_u32 s{sDst}, s{sDst}, {WS_PWD - WS_PWO}""")
    k.srd(sWt, pD, 1728 * 1280)
    k(f"""{l64}:
    s_mul_i32 s{sT}, s{sw4}, 5120
    s_add_u32 s{sDst}, s{sDst}, s{sT}
    s_lshl_b32 s{sBase}, s{sst}, 2
    s_add_u32 s{sBase}, s{sBase}, s{sw4}
    s_mul_i32 s{sBase}, s{sBase}, {32*1280}
    s_mul_i32 s{sT}, s{sj}, 160
    s_add_u32 s{sBase}, s{sBase}, s{sT}""")
    def copy(vo, n):
        for i in range(n): k(f"v_add_u32 v{vT+i}, s{sBase}, v{vo+i}\nbuffer_load_dwordx4 {vr(DT+4*i,4)}, v{vT+i}, s[{sWt}:{sWt+3}], 0 offen")
        k(f"v_add_u32 v{vT+8}, s{sDst}, v{vL16}")
        k("s_waitcnt vmcnt(0)")
        for i in range(n):
            k(f"s_mov_b32 s{sT}, {i*1024}\nbuffer_store_dwordx4 {vr(DT+4*i,4)}, v{vT+8}, s[{sO}:{sO+3}], s{sT} offen")
        k("s_waitcnt vmcnt(0)")
    if True:
        copy(V64, 5)
    k(f"""s_branch {lnext}
    {lgu}:
    s_sub_u32 s{sT}, s{sId}, 768
    s_bfe_u32 s{sst}, s{sT}, 0x40002
    s_lshr_b32 s{sj}, s{sT}, 6
    s_cmp_ge_u32 s{sst}, 10
    s_cbranch_scc1 {lnext}
    s_mul_i32 s{sDst}, s{sj}, 10
    s_add_u32 s{sDst}, s{sDst}, s{sst}
    s_mul_i32 s{sDst}, s{sDst}, 28672
    s_mul_i32 s{sT}, s{sw4}, 7168
    s_add_u32 s{sDst}, s{sDst}, s{sT}
    s_add_u32 s{sDst}, s{sDst}, {WS_PGU - WS_PWO}
    s_bitcmp1_b32 s{sw4}, 1
    s_cselect_b32 s{sWt}, s{pU}, s{pG}
    s_cselect_b32 s{sWt+1}, s{pU+1}, s{pG+1}
    s_mov_b32 s{sWt+2}, {640*3456}
    s_mov_b32 s{sWt+3}, 0x20000
    s_and_b32 s{sT}, s{sw4}, 1
    s_lshl_b32 s{sBase}, s{sst}, 1
    s_add_u32 s{sBase}, s{sBase}, s{sT}
    s_mul_i32 s{sBase}, s{sBase}, {32*3456}
    s_mul_i32 s{sT}, s{sj}, 224
    s_add_u32 s{sBase}, s{sBase}, s{sT}""")
    copy(V128, 7)
    k(f"""{lnext}:
    s_add_u32 s{sId}, s{sId}, {NPK*8}
    s_cmp_lt_u32 s{sId}, 1792
    s_cbranch_scc1 {lloop}
    {lend}:
    s_endpgm""")
    return k.text(), k.desc(NV), 65536
```

```python
NAME = "sequential_preLN__grouped_kv_mqa__glu_gated_bilinear__prompt"
WS_Q, WS_KV, WS_KMAX, WS_O, WS_H, WS_HH, WS_CS = 0x0, 0x280000, 0x2C0000, 0x300000, 0x600000, 0x900000, 0x1000000
KA = dict(x=0, wq=8, wk=16, wv=24, wo=32, wg=48, wu=56, wd=64, out=72, dbg=80, ws=88)
WS_PWO, WS_PWD, WS_PGU = 0x1100000, 0x1200000, 0x1500000
ACT_BYTES = 2048 * 640 * 2

DBG = dict(on=False)
class Asm:
    def __init__(self, name):
        self.name = name; self.l = []; self.uid = 0
    def __call__(self, s):
        for x in s.split("\n"):
            x = x.strip()
            if x: self.l.append(("" if x.endswith(":") else "  ") + x)
    def lab(self, p="L"):
        self.uid += 1; return f"{p}_{self.name}_{self.uid}"
    def ldptr(self, sd, key):
        self(f"s_load_dwordx2 s[{sd}:{sd+1}], s[0:1], {KA[key]}")
    def srd(self, sd, sp, nbytes, off=0):
        if off:
            self(f"s_add_u32 s{sd}, s{sp}, {hex(off)}\ns_addc_u32 s{sd+1}, s{sp+1}, 0")
        else:
            self(f"s_mov_b32 s{sd}, s{sp}\ns_mov_b32 s{sd+1}, s{sp+1}")
        self(f"s_mov_b32 s{sd+2}, {hex(nbytes)}\ns_mov_b32 s{sd+3}, 0x20000")
    def xsum(self, v, t1, t2, op="v_add_f32"):
        self(f"v_mov_b32 v{t1}, v{v}\nv_mov_b32 v{t2}, v{v}\ns_nop 1\nv_permlane16_swap_b32 v{t1}, v{t2}\ns_nop 1\n{op} v{v}, v{t1}, v{t2}")
        self(f"v_mov_b32 v{t1}, v{v}\nv_mov_b32 v{t2}, v{v}\ns_nop 1\nv_permlane32_swap_b32 v{t1}, v{t2}\ns_nop 1\n{op} v{v}, v{t1}, v{t2}")
    def stamp(self, i):
        if DBG['on']: self(f"s_memtime s[{64+2*i}:{65+2*i}]" if i else "s_memtime s[64:65]\ns_memrealtime s[62:63]")
    def dump(self, pws, sw, kidx, n):
        if not DBG['on']: return
        self(f"s_memrealtime s[60:61]\ns_waitcnt lgkmcnt(0)\ns_mov_b64 exec, 1")
        self(f"s_lshl_b32 s58, s2, 4\ns_add_u32 s58, s58, s{sw}\ns_lshl_b32 s58, s58, 7\ns_add_u32 s58, s58, {hex(0x2000000 + kidx*0x100000)}\nv_mov_b32 v1, s58")
        for j in range(4 + 2 * n):
            self(f"v_mov_b32 v2, s{60+j}\nglobal_store_dword v1, v2, s[{pws}:{pws+1}] offset:{4*j}\ns_nop 1")
    def text(self):
        return f".globl {self.name}\n.p2align 8\n.type {self.name},@function\n{self.name}:\n" + "\n".join(self.l) + "\n"
    def desc(self, vgpr, sgpr=96):
        acc = (vgpr + 3) // 4 * 4
        return f""".p2align 6
.amdhsa_kernel {self.name}
  .amdhsa_next_free_vgpr {vgpr}
  .amdhsa_next_free_sgpr {sgpr}
  .amdhsa_accum_offset {acc}
  .amdhsa_group_segment_fixed_size 0
  .amdhsa_kernarg_size 96
  .amdhsa_user_sgpr_count 2
  .amdhsa_user_sgpr_kernarg_segment_ptr 1
  .amdhsa_system_sgpr_workgroup_id_x 1
.end_amdhsa_kernel
"""
import struct
def f2h(x): return hex(struct.unpack("<I", struct.pack("<f", x))[0])
def vr(b, n): return f"v[{b}:{b+n-1}]"
def mfma16(d, a, b, c=None):
    return f"v_mfma_f32_16x16x32_bf16 {vr(d,4)}, {vr(a,4)}, {vr(b,4)}, " + (vr(c, 4) if c is not None else "0")
def mfma32(d, a, b, c=None):
    return f"v_mfma_f32_32x32x16_bf16 {vr(d,16)}, {vr(a,4)}, {vr(b,4)}, " + (vr(c, 16) if c is not None else "0")

def stats_finish(k, vs, vq, t1, t2, vmean, vrstd):
    k.xsum(vs, t1, t2); k.xsum(vq, t1, t2)
    k(f"""v_mul_f32 v{vmean}, {f2h(1.0/640.0)}, v{vs}
    v_mul_f32 v{t1}, {f2h(1.0/640.0)}, v{vq}
    v_fma_f32 v{t1}, -v{vmean}, v{vmean}, v{t1}
    v_max_f32 v{t1}, 0, v{t1}
    v_add_f32 v{t1}, 0x3727c5ac, v{t1}
    v_rsq_f32 v{vrstd}, v{t1}
    s_nop 0""")

def wofs(k, vd, vLane, vT, sTmp, n, cpr, magic, SB, base):
    k(f"s_movk_i32 s{sTmp}, {magic}")
    for i in range(n):
        k(f"""v_add_u32 v{vT}, {64*i}, v{vLane}
        v_mul_u32_u24 v{vT+1}, s{sTmp}, v{vT}
        v_lshrrev_b32 v{vT+1}, 16, v{vT+1}
        v_mul_u32_u24 v{vT+2}, {cpr}, v{vT+1}
        v_sub_u32 v{vT+2}, v{vT}, v{vT+2}
        v_lshrrev_b32 v{vT+3}, 1, v{vT+1}
        v_and_b32 v{vT+3}, 4, v{vT+3}
        v_xor_b32 v{vT+1}, v{vT+1}, v{vT+3}
        v_mul_u32_u24 v{vT+1}, {SB}, v{vT+1}
        v_lshlrev_b32 v{vT+2}, 4, v{vT+2}
        v_add3_u32 v{vd+i}, v{vT+1}, v{vT+2}, {base}""")

def stats_from_mfma(k, aS, aQ, vs, vq, vG, vR16, t1):
    k(f"""v_and_b32 v{t1}, 3, v{vR16}
    v_cmp_eq_u32 vcc, 1, v{t1}
    v_cndmask_b32 v{vq}, v{aQ}, v{aQ+1}, vcc
    v_cmp_eq_u32 vcc, 2, v{t1}
    v_cndmask_b32 v{vq}, v{vq}, v{aQ+2}, vcc
    v_cmp_eq_u32 vcc, 3, v{t1}
    v_cndmask_b32 v{vq}, v{vq}, v{aQ+3}, vcc
    v_lshrrev_b32 v{t1}, 2, v{vR16}
    v_cmp_eq_u32 vcc, v{t1}, v{vG}
    v_cndmask_b32 v{vq}, 0, v{vq}, vcc
    v_cmp_eq_u32 vcc, 0, v{vG}
    v_cndmask_b32 v{vs}, 0, v{aS}, vcc""")

def pair16(k, a, b):
    k(f"""s_nop 1
    v_permlane32_swap_b32 v{a}, v{b}
    v_permlane32_swap_b32 v{a+1}, v{b+1}
    s_nop 1
    v_permlane16_swap_b32 v{a}, v{b}
    v_permlane16_swap_b32 v{a+1}, v{b+1}
    s_nop 1""")
```

```python
from gen_common import *

def gateup(name, NS=3):
    k = Asm(name)
    SA, SB = 1280, 3456
    NST = 10
    A_SZ, B_SZ = 16384, 14336
    ST = A_SZ + 2 * B_SZ
    BSTEP = 64 * SB
    sA, sG, sU, sO, sC = 4, 8, 12, 16, 20
    sW, sRB, sJ, soffA, soffB, sm, sT = 24, 25, 26, 27, 28, 30, 33
    pWS, pG, pU = 40, 42, 44
    sBsel = 56
    vLane, vG, vR16 = 1, 2, 3
    vLd = 4
    vX = 11
    vW0, vW1 = 13, 14
    vT = 16
    vOut, vSum0, vSq0, vSum1, vSq1 = 28, 29, 30, 31, 32
    ONE = 33
    XF = 36
    WF = 68
    ACC = 100
    CS = WF
    NV = 164
    CSL = NS * ST
    def wf(p, t): return WF + (t * 8 if (p == 0 or t < 2) else 32 + (t - 2) * 8)
    k(f"s_cmp_ge_u32 s2, 256\ns_cbranch_scc1 L_{name}_end")
    k.stamp(0)
    k.ldptr(pWS, 'ws')
    k(f"""v_and_b32 v{vLane}, 63, v0
    v_lshrrev_b32 v{vT}, 6, v0
    v_lshrrev_b32 v{vG}, 4, v{vLane}
    v_readfirstlane_b32 s{sW}, v{vT}
    v_and_b32 v{vR16}, 15, v{vLane}
    s_lshr_b32 s{sT}, s2, 3
    s_bfe_u32 s{sRB}, s2, 0x10002
    s_lshl_b32 s{sRB}, s{sRB}, 3
    s_lshr_b32 s{sT+1}, s{sT}, 2
    s_add_u32 s{sRB}, s{sRB}, s{sT+1}
    s_and_b32 s{sJ}, s2, 3
    s_lshl_b32 s{sJ}, s{sJ}, 2
    s_and_b32 s{sT}, s{sT}, 3
    s_add_u32 s{sJ}, s{sJ}, s{sT}""")
    def mk_srds():
        k("s_waitcnt lgkmcnt(0)")
        k.srd(sA, pWS, ACT_BYTES, WS_H); k.srd(sG, pWS, 16 * 10 * 28672, WS_PGU)
        k.srd(sO, pWS, 2048 * 3456, WS_HH); k.srd(sC, pWS, 3456 * 4, WS_CS)
    lL = [k.lab() for _ in range(4)]
    for i in range(4): k(f"s_cmp_eq_u32 s{sW}, {8+i}\ns_cbranch_scc1 {lL[i]}")
    mk_srds()
    k(f"""s_and_b32 s{sT}, s{sW}, 1
    s_lshl_b32 s{sT}, s{sT}, 13
    v_and_b32 v{vT}, 7, v{vR16}
    v_xor_b32 v{vT}, v{vT}, v{vG}
    v_lshlrev_b32 v{vT+1}, 7, v{vR16}
    v_add_u32 v{vT+1}, s{sT}, v{vT+1}
    v_lshl_add_u32 v{vX}, v{vT}, 4, v{vT+1}
    v_xor_b32 v{vT}, 4, v{vT}
    v_lshl_add_u32 v{vX+1}, v{vT}, 4, v{vT+1}""")
    k(f"""v_lshrrev_b32 v{vT}, 2, v{vLane}
    v_and_b32 v{vT}, 3, v{vT}
    v_and_b32 v{vT+1}, 1, v{vG}
    v_lshlrev_b32 v{vT+1}, 2, v{vT+1}
    v_xor_b32 v{vT}, v{vT}, v{vT+1}
    v_lshl_add_u32 v{vT}, v{vG}, 3, v{vT}
    v_xor_b32 v{vT+1}, 4, v{vT}
    v_and_b32 v{vT+2}, 3, v{vLane}
    v_lshlrev_b32 v{vT+2}, 3, v{vT+2}
    s_lshr_b32 s{sT}, s{sW}, 1
    s_lshl_b32 s{sT}, s{sT}, 6
    s_add_u32 s{sT}, s{sT}, {A_SZ}
    v_add_u32 v{vT+2}, s{sT}, v{vT+2}
    v_mul_u32_u24 v{vW0}, 224, v{vT}
    v_mul_u32_u24 v{vW1}, 224, v{vT+1}
    v_add_u32 v{vW0}, v{vW0}, v{vT+2}
    v_add_u32 v{vW1}, v{vW1}, v{vT+2}""")
    k(f"""s_lshl_b32 s{sT}, s{sRB}, 7
    s_and_b32 s{sT+1}, s{sW}, 1
    s_lshl_b32 s{sT+1}, s{sT+1}, 6
    s_add_u32 s{sT}, s{sT}, s{sT+1}
    v_add_u32 v{vT}, s{sT}, v{vR16}
    v_mul_u32_u24 v{vOut}, 3456, v{vT}
    s_mul_i32 s{sT}, s{sJ}, 224
    s_lshr_b32 s{sT+1}, s{sW}, 1
    s_lshl_b32 s{sT+1}, s{sT+1}, 6
    s_add_u32 s{sT}, s{sT}, s{sT+1}
    v_lshlrev_b32 v{vT}, 3, v{vG}
    v_add3_u32 v{vOut}, v{vOut}, v{vT}, s{sT}
    v_mov_b32 v{ONE}, 0x3f803f80""")
    for i in range(64): k(f"v_mov_b32 v{ACC+i}, 0")
    for r in (vSum0, vSq0, vSum1, vSq1): k(f"v_mov_b32 v{r}, 0")
    sIss, sSlot, sSt, sD, sSTc, sRd = 46, 47, 48, 49, 50, 51
    def loader(which, half):
        pcs = []
        if which == 0:
            k(f"""s_lshl_b32 s{sT}, s{sRB}, 7
            s_mul_i32 s{sT}, s{sT}, {SA}
            v_lshrrev_b32 v{vT}, 3, v{vLane}
            v_and_b32 v{vT+1}, 7, v{vLane}
            v_xor_b32 v{vT+1}, v{vT+1}, v{vT}
            v_lshlrev_b32 v{vT+1}, 4, v{vT+1}
            v_mul_u32_u24 v{vT}, {SA}, v{vT}
            v_add3_u32 v{vLd}, v{vT}, v{vT+1}, s{sT}""")
            for i in range(16): pcs.append((vLd, sA, i * 8 * SA, i * 1024))
            step = 128
            k(f"""s_mul_i32 s{sT}, s{sJ}, 448
            v_lshlrev_b32 v{vT}, 4, v{vLane}
            v_add_u32 v{vT}, s{sT}, v{vT}
            v_add_u32 v{vT+1}, {1728*4 - 448}, v{vT}
            v_cmp_lt_u32 vcc, 27, v{vLane}
            v_cndmask_b32 v{vT}, v{vT}, v{vT+1}, vcc
            v_mov_b32 v{vT+1}, 0x100000
            v_cmp_lt_u32 vcc, 55, v{vLane}
            v_cndmask_b32 v{vT}, v{vT}, v{vT+1}, vcc
""")
        else:
            k(f"s_mul_i32 s{sT}, s{sJ}, {10*28672}\nv_lshlrev_b32 v{vLd}, 4, v{vLane}\nv_add_u32 v{vLd}, s{sT}, v{vLd}")
            for i in range(28): pcs.append((vLd, sG, i * 1024, A_SZ + i * 1024))
            step = 28672
        pcs = pcs[half::2]
        n = len(pcs); srd = pcs[0][1]
        mk_srds()
        if which == 0 and half == 0: k(f"s_mov_b32 m0, {CSL}\ns_nop 0\nbuffer_load_dwordx4 v{vT}, s[{sC}:{sC+3}], 0 offen lds")
        k(f"s_setprio 3\ns_mov_b32 s{soffA}, 0\ns_mov_b32 s{sSlot}, 0\ns_mov_b32 s{sSt}, 0")
        k.stamp(1)
        l0, l1 = k.lab(), k.lab()
        k(f"""{l0}:
        s_cmp_lt_u32 s{sSt}, {NS-1}
        s_cbranch_scc1 {l1}
        s_waitcnt vmcnt({(NS-2)*n})
        s_barrier
        {l1}:""")
        for (v, srd, sa, la) in pcs:
            k(f"s_add_u32 m0, s{sSlot}, {la}\ns_add_u32 s{sT}, s{soffA}, {sa}\nbuffer_load_dwordx4 v{v}, s[{srd}:{srd+3}], s{sT} offen lds")
        k(f"""s_add_u32 s{soffA}, s{soffA}, {step}
        s_add_u32 s{sSlot}, s{sSlot}, {ST}
        s_cmp_eq_u32 s{sSlot}, {NS*ST}
        s_cselect_b32 s{sSlot}, 0, s{sSlot}
        s_add_u32 s{sSt}, s{sSt}, 1
        s_cmp_lt_u32 s{sSt}, {NST}
        s_cbranch_scc1 {l0}""")
        for r in range(NS - 2, -1, -1): k(f"s_waitcnt vmcnt({r*n})\ns_barrier")
        k("s_barrier")
        for i in range(2, 7): k.stamp(i)
        k.dump(pWS, sW, 3, 7)
        k("s_endpgm")

    def body(cls):
        nt = 2 if cls == 0 else 1
        k.stamp(1)
        k(f"s_mov_b32 s{sSt}, 0\ns_mov_b32 s{sSTc}, {ST}")
        k.stamp(2)
        def reads(kk, p):
            for m in range(4):
                k(f"ds_read_b128 {vr(XF + p*16 + m*4, 4)}, v{vX+kk} offset:{m*2048}")
            for t in range(nt):
                for mat in range(2):
                    b = WF + p * 16 + (t * 2 + mat) * 4
                    off = mat * B_SZ + kk * 32 * 224 + t * 32
                    k(f"ds_read_b64_tr_b16 {vr(b,2)}, v{vW0} offset:{off}\nds_read_b64_tr_b16 {vr(b+2,2)}, v{vW1} offset:{off}")
        acc = lambda t, mat, m: ACC + ((t * 2 + mat) * 4 + m) * 4
        STS, STQ, ONES = ACC + 32, ACC + 48, WF + 8
        def mm(p):
            for t in range(nt):
                for mat in range(2):
                    for m in range(4):
                        k(mfma16(acc(t, mat, m), WF + p * 16 + (t * 2 + mat) * 4, XF + p * 16 + m * 4, acc(t, mat, m)))
            if cls == 1:
                for m in range(4):
                    xs = XF + p * 16 + m * 4
                    k(mfma16(STS + m * 4, ONES, xs, STS + m * 4)); k(mfma16(STQ + m * 4, xs, xs, STQ + m * 4))
        if cls == 1:
            for i in range(4): k(f"v_mov_b32 v{ONES+i}, 0x3f803f80")
        k("s_barrier")
        reads(0, 0)
        k(f"s_mov_b32 s{sD}, s{sSTc}\ns_mov_b32 s{sRd}, 1")
        lp = k.lab()
        k(f"{lp}:\ns_waitcnt lgkmcnt(0)")
        reads(1, 1)
        mm(0)
        k("s_waitcnt lgkmcnt(0)\ns_barrier")
        for r in (vX, vX + 1, vW0, vW1): k(f"v_add_u32 v{r}, s{sD}, v{r}")
        reads(0, 0)
        mm(1)
        k(f"""s_add_u32 s{sSt}, s{sSt}, 1
        s_add_u32 s{sRd}, s{sRd}, 1
        s_cmp_eq_u32 s{sRd}, {NS}
        s_cselect_b32 s{sD}, {-(NS-1)*ST}, s{sSTc}
        s_cselect_b32 s{sRd}, 0, s{sRd}
        s_cmp_lt_u32 s{sSt}, {NST}
        s_cbranch_scc1 {lp}""")
        k("s_waitcnt lgkmcnt(0)\ns_nop 7\ns_nop 7")
        k.stamp(5)
        k(f"""s_lshr_b32 s{sT}, s{sW}, 1
        s_lshl_b32 s{sT+1}, s{sT}, 7
        s_add_u32 s{sT+1}, s{sT+1}, {CSL}
        v_lshlrev_b32 v{vT+10}, 4, v{vG}
        v_add_u32 v{vT+10}, s{sT+1}, v{vT+10}
        s_lshl_b32 s{sT}, s{sT}, 5
        s_mul_i32 s{sT+1}, s{sJ}, 112
        s_add_u32 s{sT+1}, s{sT+1}, s{sT}""")
        for t in range(nt):
            for mat in range(2):
                k(f"ds_read_b128 {vr(CS+t*8+mat*4,4)}, v{vT+10} offset:{mat*448 + t*64}")
        MS = XF + 16
        k(f"s_and_b32 s{sT}, s{sW}, 1\ns_lshl_b32 s{sT}, s{sT}, 9\nv_lshlrev_b32 v{vT+4}, 3, v{vR16}\nv_add_u32 v{vT+4}, s{sT}, v{vT+4}")
        if cls == 1:
            for m in range(4):
                stats_from_mfma(k, STS + m * 4, STQ + m * 4, vSum0, vSq0, vG, vR16, vT)
                stats_finish(k, vSum0, vSq0, vT, vT + 1, MS + 2 * m, MS + 2 * m + 1)
            k("s_barrier")
            for m in range(4): k(f"ds_write_b64 v{vT+4}, {vr(MS+2*m,2)} offset:{m*128}")
            k("s_waitcnt lgkmcnt(0)\ns_barrier")
        else:
            k("s_barrier\ns_barrier")
            for m in range(4): k(f"ds_read_b64 {vr(MS+2*m,2)}, v{vT+4} offset:{m*128}")
            k("s_waitcnt lgkmcnt(0)")
        for m in range(4): k(f"v_mul_f32 v{MS+2*m+1}, v{MS+2*m+1}, v{MS+2*m+1}")
        for m in range(1, 4): k(f"s_mov_b32 s{51+m}, {m*16*3456}")
        so = lambda m: '0' if m == 0 else f's{51+m}'
        k(f"v_lshl_add_u32 v{vT+11}, v{vG}, 3, v{vOut}")
        def tile(t, m, dst):
            g, u = acc(t, 0, m), acc(t, 1, m)
            for r in range(4):
                k(f"""v_fma_f32 v{g+r}, -v{MS+2*m}, v{CS+t*8+r}, v{g+r}
                v_fma_f32 v{u+r}, -v{MS+2*m}, v{CS+t*8+4+r}, v{u+r}
                v_mul_f32 v{g+r}, v{g+r}, v{MS+2*m+1}
                v_mul_f32 v{g+r}, v{g+r}, v{u+r}""")
            k(f"v_cvt_pk_bf16_f32 v{dst}, v{g}, v{g+1}\nv_cvt_pk_bf16_f32 v{dst+1}, v{g+2}, v{g+3}")
        lfin, lone = k.lab(), k.lab()
        k(f"s_cmp_gt_u32 s{sT+1}, {1728 - 16}\ns_cbranch_scc1 {lfin}")
        if nt == 2:
            k(f"s_cmp_gt_u32 s{sT+1}, {1728 - 32}\ns_cbranch_scc1 {lone}")
            for m in range(4):
                tile(0, m, XF + m * 4); tile(1, m, XF + m * 4 + 2)
                pair16(k, XF + m * 4, XF + m * 4 + 2)
                k(f"buffer_store_dwordx4 {vr(XF + m * 4, 4)}, v{vT+11}, s[{sO}:{sO+3}], {so(m)} offen")
            k(f"s_branch {lfin}")
        k(f"{lone}:")
        for m in range(4):
            tile(0, m, XF + m * 4)
            k(f"buffer_store_dwordx2 {vr(XF + m * 4, 2)}, v{vOut}, s[{sO}:{sO+3}], {so(m)} offen")
        k(f"{lfin}:")
        k.stamp(6); k.dump(pWS, sW, 3, 7)
        k("s_endpgm")
    lB = k.lab()
    k(f"s_cmp_ge_u32 s{sW}, 6\ns_cbranch_scc1 {lB}")
    body(0)
    k(f"{lB}:")
    body(1)
    for i in range(4):
        k(f"{lL[i]}:")
        loader(i & 1, i >> 1)
    k(f"L_{name}_end:\ns_endpgm")
    return k.text(), k.desc(NV), NS * ST + 1024
```

```python
from gen_common import *
import math

def gemm64(name, mode, NS, kidx=0):
    k = Asm(name)
    qkv = mode == 'qkv'
    KD = 1728 if mode == 'down' else 640
    SA = KD * 2
    SB = 1280
    NST = (KD + 127) // 128
    A_SZ, B_SZ, E_SZ = 16384, 20480, (4096 if qkv else 0)
    ST = A_SZ + B_SZ + E_SZ
    LPS = 4 + 5 + (1 if qkv else 0)
    What = dict(qkv='wq', wo='wo', down='wd')[mode]
    Wbytes = KD * SB
    Abytes = 2048 * 3456 if mode == 'down' else ACT_BYTES
    assert NS == 4
    sA, sB, sE, sO, sO2, sR = 4, 8, 12, 16, 20, 12
    sW, sRB, sJ, soffA, soffB, soffE, smA, smB, smE, sT = 24, 25, 26, 27, 28, 29, 30, 31, 32, 33
    pX, pW, pWS, pK, pV, pOut = 40, 42, 44, 46, 48, 50
    sIss, sSlot, sSt, sD = 54, 55, 56, 57
    BSTEP = 128 * SB
    vLane, vG, vR16 = 1, 2, 3
    vAo = 4
    vBo = 8
    vEo = 13
    vX = 14
    vW0, vW1, vE0, vE1 = 18, 19, 20, 21
    vT = 22
    XF = 32
    WF = 48
    ACC = 72
    CS = 96
    ONES = 108
    vSum, vSq = 112, 113
    RES = 116
    vOut = 128
    vMean, vRstd = 129, 131
    STS, STQ = 136, 140
    NV = 144
    k(f"s_cmp_ge_u32 s2, 256\ns_cbranch_scc1 L_{name}_end")
    k.stamp(0)
    k.ldptr(pWS, 'ws')
    if qkv: k.ldptr(pW, What)
    if qkv: k.ldptr(pX, 'x'); k.ldptr(pK, 'wk'); k.ldptr(pV, 'wv')
    if mode == 'wo': k.ldptr(pX, 'x')
    if mode == 'down': k.ldptr(pOut, 'out')
    k(f"""v_and_b32 v{vLane}, 63, v0
    v_lshrrev_b32 v{vT}, 6, v0
    v_lshrrev_b32 v{vG}, 4, v{vLane}
    v_readfirstlane_b32 s{sW}, v{vT}
    v_and_b32 v{vR16}, 15, v{vLane}
    s_and_b32 s{sT}, s2, 7
    s_lshr_b32 s{sJ}, s2, 3
    s_lshl_b32 s{sRB}, s{sT}, 2
    s_lshr_b32 s{sT}, s{sJ}, 3
    s_add_u32 s{sRB}, s{sRB}, s{sT}
    s_and_b32 s{sJ}, s{sJ}, 7""")
    def mk_srds():
        k("s_waitcnt lgkmcnt(0)")
        if qkv:
            k.srd(sA, pX, ACT_BYTES); k.srd(sB, pW, Wbytes)
            k(f"s_bitcmp1_b32 s{sJ}, 1\ns_cselect_b32 s{sE}, s{pV}, s{pK}\ns_cselect_b32 s{sE+1}, s{pV+1}, s{pK+1}\ns_cmp_lt_u32 s{sJ}, 4\ns_cselect_b32 s{sE+2}, 25600, 0\ns_mov_b32 s{sE+3}, 0x20000")
            k.srd(sO, pWS, ACT_BYTES, WS_Q); k.srd(sO2, pWS, 0x40000 + 512, WS_KV)
        elif mode == 'wo':
            k.srd(sA, pWS, ACT_BYTES, WS_O); k.srd(sB, pWS, 8*NST*20480, WS_PWO); k.srd(sR, pX, ACT_BYTES); k.srd(sO, pWS, ACT_BYTES, WS_H)
        else:
            k.srd(sA, pWS, 2048 * 3456, WS_HH); k.srd(sB, pWS, 8*NST*20480, WS_PWD); k.srd(sR, pWS, ACT_BYTES, WS_H); k.srd(sO, pOut, ACT_BYTES)

        sIss, sSlot, sSt, sD = 54, 55, 56, 57
    lL = [k.lab() for _ in range(4)]
    for i in range(4): k(f"s_cmp_eq_u32 s{sW}, {4+i}\ns_cbranch_scc1 {lL[i]}")
    mk_srds()
    k(f"""s_and_b32 s{sT}, s{sW}, 1
    s_lshl_b32 s{sT}, s{sT}, 13
    v_xor_b32 v{vT}, v{vG}, v{vR16}
    v_lshlrev_b32 v{vT+1}, 8, v{vR16}
    v_add_u32 v{vT+1}, s{sT}, v{vT+1}""")
    for kk in range(4):
        k(f"""v_xor_b32 v{vT+2}, {4*kk}, v{vT}
        v_lshl_add_u32 v{vX+kk}, v{vT+2}, 4, v{vT+1}""")
    k(f"""v_lshrrev_b32 v{vT}, 2, v{vLane}
        v_and_b32 v{vT}, 3, v{vT}
        v_and_b32 v{vT+1}, 1, v{vG}
        v_lshlrev_b32 v{vT+1}, 2, v{vT+1}
        v_xor_b32 v{vT}, v{vT}, v{vT+1}
        v_lshl_add_u32 v{vT}, v{vG}, 3, v{vT}
        v_xor_b32 v{vT+1}, 4, v{vT}
        v_and_b32 v{vT+2}, 3, v{vLane}
        v_lshlrev_b32 v{vT+2}, 3, v{vT+2}
        v_mul_u32_u24 v{vW0}, 160, v{vT}
        v_mul_u32_u24 v{vW1}, 160, v{vT+1}
        v_add3_u32 v{vW0}, v{vW0}, v{vT+2}, {A_SZ//1024}*1024-{A_SZ//1024}*1024
        v_add_u32 v{vW1}, v{vW1}, v{vT+2}
        v_add_u32 v{vW0}, {A_SZ}, v{vW0}
        v_add_u32 v{vW1}, {A_SZ}, v{vW1}""".replace(f", {A_SZ//1024}*1024-{A_SZ//1024}*1024", ", 0"))
    if qkv:
        k(f"""v_lshl_add_u32 v{vE0}, v{vT}, 5, v{vT+2}
        v_lshl_add_u32 v{vE1}, v{vT+1}, 5, v{vT+2}
        v_add_u32 v{vE0}, {A_SZ+B_SZ}, v{vE0}
        v_add_u32 v{vE1}, {A_SZ+B_SZ}, v{vE1}""")
    k(f"""s_lshl_b32 s{sT}, s{sRB}, 6
    s_and_b32 s{sT+1}, s{sW}, 1
    s_lshl_b32 s{sT+1}, s{sT+1}, 5
    s_add_u32 s{sT}, s{sT}, s{sT+1}
    v_add_u32 v{vT}, s{sT}, v{vR16}
    v_mul_u32_u24 v{vOut}, 1280, v{vT}
    s_mul_i32 s{sT}, s{sJ}, 160
    s_lshr_b32 s{sT+1}, s{sW}, 1
    s_mul_i32 s{sT+1}, s{sT+1}, 96
    s_add_u32 s{sT}, s{sT}, s{sT+1}
    v_lshlrev_b32 v{vT}, 3, v{vG}
    v_add3_u32 v{vOut}, v{vOut}, v{vT}, s{sT}""")
    for i in range(24): k(f"v_mov_b32 v{ACC+i}, 0")
    if qkv:
        for i in range(12): k(f"v_mov_b32 v{CS+i}, 0")
        for i in range(4): k(f"v_mov_b32 v{ONES+i}, 0x3f803f80")
        for i in range(8): k(f"v_mov_b32 v{STS+i}, 0")
    def loader(which, half):
        pcs = []
        if which == 0:
            k(f"s_lshl_b32 s{sT}, s{sRB}, 6\ns_mul_i32 s{sT}, s{sT}, {SA}")
            for i in range(4):
                k(f"""v_add_u32 v{vT}, {4*i}, v{vG}
                v_xor_b32 v{vT+1}, v{vT}, v{vR16}
                v_lshlrev_b32 v{vT+1}, 4, v{vT+1}
                v_mul_u32_u24 v{vT}, {SA}, v{vT}
                v_add3_u32 v{vAo+i}, v{vT}, v{vT+1}, s{sT}""")
            for w in range(4):
                for i in range(4): pcs.append((vAo + i, sA, soffA, w * 16 * SA, w * 4096 + i * 1024))
            step = [(soffA, 256)]
            if qkv:
                k(f"""v_lshrrev_b32 v{vT}, 1, v{vLane}
                v_lshrrev_b32 v{vT+1}, 1, v{vT}
                v_and_b32 v{vT+1}, 4, v{vT+1}
                v_xor_b32 v{vT}, v{vT}, v{vT+1}
                v_mul_u32_u24 v{vT}, 40, v{vT}
                v_and_b32 v{vT+1}, 1, v{vLane}
                v_lshlrev_b32 v{vT+1}, 4, v{vT+1}
                s_and_b32 s{sT}, s{sJ}, 1
                s_lshl_b32 s{sT}, s{sT}, 5
                v_add3_u32 v{vEo}, v{vT}, v{vT+1}, s{sT}""")
                for w in range(4): pcs.append((vEo, sE, soffE, w * 32 * 40, A_SZ + B_SZ + w * 1024))
                step.append((soffE, 128 * 40))
        else:
            if qkv:
                k(f"s_mul_i32 s{sT}, s{sJ}, 160")
                wofs(k, vBo, vLane, vT, sT + 1, 5, 10, 6554, SB, f"s{sT}")
                wstep = 32 * SB; step = [(soffB, 128 * SB)]
            else:
                k(f"s_mul_i32 s{sT}, s{sJ}, {NST*20480}\nv_lshlrev_b32 v{vT}, 4, v{vLane}\nv_add_u32 v{vBo}, s{sT}, v{vT}")
                for i in range(1, 5): k(f"v_add_u32 v{vBo+i}, {1024*i}, v{vBo}")
                wstep = 5120; step = [(soffB, 20480)]
            for w in range(4):
                for i in range(5): pcs.append((vBo + i, sB, soffB, w * wstep, A_SZ + w * 5120 + i * 1024))
        pcs = pcs[half::2]
        n = len(pcs)
        mk_srds()
        def issue():
            for (v, srd, so, sa, la) in pcs:
                k(f"s_add_u32 m0, s{sSlot}, {la}\ns_add_u32 s{sT}, s{so}, {sa}\nbuffer_load_dwordx4 v{v}, s[{srd}:{srd+3}], s{sT} offen lds")
            for r, d in step: k(f"s_add_u32 s{r}, s{r}, {d}")
            k(f"s_add_u32 s{sSlot}, s{sSlot}, {ST}\ns_cmp_eq_u32 s{sSlot}, {NS*ST}\ns_cselect_b32 s{sSlot}, 0, s{sSlot}")
        k(f"s_setprio 3\ns_mov_b32 s{soffA}, 0\ns_mov_b32 s{soffB}, 0\ns_mov_b32 s{soffE}, 0\ns_mov_b32 s{sSlot}, 0\ns_mov_b32 s{sSt}, 0")
        k.stamp(1)
        l0, l1, l2 = k.lab(), k.lab(), k.lab()
        k(f"""{l0}:
        s_cmp_lt_u32 s{sSt}, {NS-1}
        s_cbranch_scc1 {l1}
        s_waitcnt vmcnt({(NS-2)*n})
        s_barrier
        {l1}:""")
        issue()
        k(f"s_add_u32 s{sSt}, s{sSt}, 1\ns_cmp_lt_u32 s{sSt}, {NST}\ns_cbranch_scc1 {l0}")
        for r in range(NS - 2, -1, -1): k(f"s_waitcnt vmcnt({r*n})\ns_barrier")
        for i in range(2, 7): k.stamp(i)
        k.dump(pWS, sW, kidx, 7)
        k("s_endpgm")

    def body(cls):
        tiles = [('B', 0), ('B', 1), ('B', 2)] if cls == 0 else ([('B', 3), ('B', 4)] + ([('E', 0)] if qkv else []))
        nt = len(tiles)
        nres = 0
        k.stamp(1)
        k(f"s_mov_b32 s{sSt}, 0\ns_mov_b32 s{sD}, 0\ns_mov_b32 s59, {ST}")
        k.stamp(2)
        def resload():
            for t in range(nt):
                for m in range(2):
                    k(f"buffer_load_dwordx2 {vr(RES + (t*2+m)*2, 2)}, v{vOut}, s[{sR}:{sR+3}], s{sT+2+m} offen offset:{t*32}")
        def reads(kk, p):
            for m in range(2):
                k(f"ds_read_b128 {vr(XF + p*8 + m*4, 4)}, v{vX+kk} offset:{m*4096}")
            for ti, (src, t) in enumerate(tiles):
                b = WF + p * 12 + ti * 4
                if src == 'B':
                    off = kk * 5120 + t * 32
                    k(f"ds_read_b64_tr_b16 {vr(b,2)}, v{vW0} offset:{off}\nds_read_b64_tr_b16 {vr(b+2,2)}, v{vW1} offset:{off}")
                else:
                    off = kk * 1024
                    k(f"ds_read_b64_tr_b16 {vr(b,2)}, v{vE0} offset:{off}\nds_read_b64_tr_b16 {vr(b+2,2)}, v{vE1} offset:{off}")
        nrd = 2 + 2 * nt
        def stage(nkk, do_issue):
            k("s_barrier")
            regs = [vX + i for i in range(4)] + [vW0, vW1] + ([vE0, vE1] if qkv else [])
            for r in regs: k(f"v_add_u32 v{r}, s{sD}, v{r}")
            reads(0, 0)
            for kk in range(nkk):
                p = kk & 1
                if kk < nkk - 1:
                    reads(kk + 1, 1 - p); k(f"s_waitcnt lgkmcnt({nrd})")
                else:
                    k("s_waitcnt lgkmcnt(0)")
                for ti in range(nt):
                    for m in range(2):
                        a = ACC + (ti * 2 + m) * 4
                        k(mfma16(a, WF + p * 12 + ti * 4, XF + p * 8 + m * 4, a))
                    if qkv:
                        k(mfma16(CS + ti * 4, WF + p * 12 + ti * 4, ONES, CS + ti * 4))
                        if ti == nt - 1:
                            xs = XF + p * 8 + cls * 4
                            k(mfma16(STS, ONES, xs, STS)); k(mfma16(STQ, xs, xs, STQ))
        NFULL = KD // 128
        lp = k.lab()
        k(f"{lp}:")
        stage(4, True)
        if not qkv:
            lsk = k.lab()
            k(f"s_cmp_eq_u32 s{sSt}, 1\ns_cbranch_scc0 {lsk}")
            resload()
            k(f"{lsk}:")
        k(f"""s_add_u32 s{sSt}, s{sSt}, 1
        s_and_b32 s{sT}, s{sSt}, {NS-1}
        s_cmp_eq_u32 s{sT}, 0
        s_cselect_b32 s{sD}, {-(NS-1)*ST}, s59
        s_cmp_lt_u32 s{sSt}, {NFULL}
        s_cbranch_scc1 {lp}""")
        if NST > NFULL: stage((KD - NFULL * 128) // 32, False)
        k("s_waitcnt vmcnt(0)")
        k("s_nop 7\ns_nop 7")
        k.stamp(5)
        if qkv:
            stats_from_mfma(k, STS, STQ, vSum, vSq, vG, vR16, vT)
            stats_finish(k, vSum, vSq, vT, vT + 1, vT + 2, vT + 3)
            k(f"""s_and_b32 s{sT}, s{sW}, 1
            s_lshl_b32 s{sT}, s{sT}, 8
            v_lshlrev_b32 v{vT+4}, 3, v{vR16}
            v_add_u32 v{vT+4}, s{sT}, v{vT+4}
            s_barrier
            ds_write_b64 v{vT+4}, {vr(vT+2,2)} offset:{cls*128}
            s_waitcnt lgkmcnt(0)
            s_barrier
            ds_read_b64 {vr(vT+6,2)}, v{vT+4}
            ds_read_b64 {vr(vT+8,2)}, v{vT+4} offset:128
            s_waitcnt lgkmcnt(0)""")
            mean = [vT + 6, vT + 8]; rstd = [vT + 7, vT + 9]
            C = (20 ** -0.5) * math.log2(math.e)
            k(f"v_mul_f32 v{vMean}, {f2h(C)}, v{rstd[0]}\nv_mul_f32 v{vMean+1}, {f2h(C)}, v{rstd[1]}")
            for ti, (src, t) in enumerate(tiles):
                for m in range(2):
                    a = ACC + (ti * 2 + m) * 4
                    sc = (vMean + m) if src == 'B' else rstd[m]
                    for r in range(4):
                        k(f"v_fma_f32 v{a+r}, -v{mean[m]}, v{CS+ti*4+r}, v{a+r}\nv_mul_f32 v{a+r}, v{a+r}, v{sc}")
                if src == 'B':
                    for m in range(2):
                        a = ACC + (ti * 2 + m) * 4
                        k(f"v_cvt_pk_bf16_f32 v{a}, v{a}, v{a+1}\nv_cvt_pk_bf16_f32 v{a+1}, v{a+2}, v{a+3}")
                        k(f"s_mov_b32 s{sT}, {m*16*1280}\nbuffer_store_dwordx2 {vr(a,2)}, v{vOut}, s[{sO}:{sO+3}], s{sT} offen offset:{(t - 3*cls)*32}")
            if cls == 1:
                e0, e1 = ACC + 4 * 4, ACC + 5 * 4
                lk, lv, lend = k.lab(), k.lab(), k.lab()
                k(f"s_cmp_ge_u32 s{sJ}, 4\ns_cbranch_scc1 {lend}")
                k(f"""s_lshl_b32 s{sT}, s{sRB}, 1
                s_and_b32 s{sT+1}, s{sW}, 1
                s_add_u32 s{sT}, s{sT}, s{sT+1}
                s_lshl_b32 s{sT+2}, s{sT}, 12
                s_bitcmp1_b32 s{sJ}, 1
                s_cbranch_scc1 {lv}""")
                k(f"""s_and_b32 s{sT+1}, s{sJ}, 1
                s_lshl_b32 s{sT+3}, s{sT+1}, 10
                s_add_u32 s{sT+2}, s{sT+2}, s{sT+3}
                v_lshrrev_b32 v{vT}, 1, v{vG}
                v_lshlrev_b32 v{vT}, 9, v{vT}
                v_lshl_add_u32 v{vT}, v{vR16}, 4, v{vT}
                v_and_b32 v{vT+1}, 1, v{vG}
                v_lshl_add_u32 v{vT}, v{vT+1}, 3, v{vT}
                v_add_u32 v{vT}, s{sT+2}, v{vT}
                v_cmp_eq_u32 vcc, 0, v{vG}
                v_cmp_eq_u32 s[52:53], 1, v{vG}
                s_cmp_eq_u32 s{sT+1}, 0
                s_cselect_b64 vcc, -1, vcc
                s_cselect_b64 s[52:53], 0, s[52:53]
                v_mov_b32 v{vT+2}, 0""")
                for m, e in enumerate((e0, e1)):
                    k(f"""v_cvt_pk_bf16_f32 v{e}, v{e}, v{e+1}
                    v_cvt_pk_bf16_f32 v{e+1}, v{e+2}, v{e+3}
                    v_cndmask_b32 v{e}, 0, v{e}, vcc
                    v_cndmask_b32 v{e+1}, 0, v{e+1}, vcc
                    v_dot2_f32_bf16 v{e+2}, v{e}, v{e}, v{vT+2}
                    v_dot2_f32_bf16 v{e+2}, v{e+1}, v{e+1}, v{e+2}
                    v_mov_b32 v{vT+3}, 0x3f803f80
                    v_mov_b32 v{vT+4}, 0x00003f80
                    v_cndmask_b32 v{e}, v{e}, v{vT+3}, s[52:53]
                    v_cndmask_b32 v{e+1}, v{e+1}, v{vT+4}, s[52:53]
                    buffer_store_dwordx2 {vr(e,2)}, v{vT}, s[{sO2}:{sO2+3}], 0 offen offset:{m*256}""")
                    k.xsum(e + 2, vT + 5, vT + 6)
                k(f"v_max_f32 v{e0+2}, v{e0+2}, v{e1+2}")
                for sh in (8, 4, 2, 1):
                    k(f"s_nop 1\nv_max_f32_dpp v{e0+2}, v{e0+2}, v{e0+2} row_ror:{sh} row_mask:0xf bank_mask:0xf")
                k(f"""s_lshl_b32 s{sT+1}, s{sT+1}, 6
                s_add_u32 s{sT}, s{sT}, s{sT+1}
                s_lshl_b32 s{sT}, s{sT}, 2
                s_add_u32 s{sT}, s{sT}, 0x40000
                v_mov_b32 v{vT}, s{sT}
                v_cmp_eq_u32 vcc, 0, v{vLane}
                s_and_saveexec_b64 s[52:53], vcc
                buffer_store_dword v{e0+2}, v{vT}, s[{sO2}:{sO2+3}], 0 offen
                s_mov_b64 exec, s[52:53]
                s_branch {lend}
                {lv}:""")
                k(f"""s_and_b32 s{sT+1}, s{sJ}, 1
                s_lshl_b32 s{sT+3}, s{sT+1}, 8
                s_add_u32 s{sT+2}, s{sT+2}, s{sT+3}
                s_add_u32 s{sT+2}, s{sT+2}, 2048
                v_lshlrev_b32 v{vT}, 6, v{vG}
                v_bfe_u32 v{vT+1}, v{vR16}, 2, 1
                v_lshl_add_u32 v{vT}, v{vT+1}, 9, v{vT}
                v_and_b32 v{vT+1}, 3, v{vR16}
                v_lshl_add_u32 v{vT}, v{vT+1}, 1, v{vT}
                v_lshrrev_b32 v{vT+1}, 3, v{vR16}
                v_lshl_add_u32 v{vT}, v{vT+1}, 3, v{vT}
                v_add_u32 v{vT}, s{sT+2}, v{vT}
                v_cmp_eq_u32 vcc, 0, v{vG}
                v_cmp_eq_u32 s[52:53], 1, v{vG}
                s_cmp_eq_u32 s{sT+1}, 0
                s_cselect_b64 vcc, -1, vcc
                s_cselect_b64 s[52:53], 0, s[52:53]
                v_mov_b32 v{vT+3}, 0x3f80""")
                for m, e in enumerate((e0, e1)):
                    k(f"""v_cvt_pk_bf16_f32 v{e}, v{e}, v{e+1}
                    v_cvt_pk_bf16_f32 v{e+1}, v{e+2}, v{e+3}
                    v_cndmask_b32 v{e}, 0, v{e}, vcc
                    v_cndmask_b32 v{e+1}, 0, v{e+1}, vcc
                    v_cndmask_b32 v{e}, v{e}, v{vT+3}, s[52:53]
                    buffer_store_short v{e}, v{vT}, s[{sO2}:{sO2+3}], 0 offen offset:{m*1024}
                    buffer_store_short_d16_hi v{e}, v{vT}, s[{sO2}:{sO2+3}], 0 offen offset:{m*1024+16}
                    buffer_store_short v{e+1}, v{vT}, s[{sO2}:{sO2+3}], 0 offen offset:{m*1024+32}
                    buffer_store_short_d16_hi v{e+1}, v{vT}, s[{sO2}:{sO2+3}], 0 offen offset:{m*1024+48}""")
                k(f"{lend}:")
        else:
            for ti in range(nt):
                for m in range(2):
                    a = ACC + (ti * 2 + m) * 4; r = RES + (ti * 2 + m) * 2
                    k(f"""v_lshlrev_b32 v{vT}, 16, v{r}
                    v_and_b32 v{vT+1}, 0xffff0000, v{r}
                    v_lshlrev_b32 v{vT+2}, 16, v{r+1}
                    v_and_b32 v{vT+3}, 0xffff0000, v{r+1}
                    v_add_f32 v{a}, v{a}, v{vT}
                    v_add_f32 v{a+1}, v{a+1}, v{vT+1}
                    v_add_f32 v{a+2}, v{a+2}, v{vT+2}
                    v_add_f32 v{a+3}, v{a+3}, v{vT+3}
                    v_cvt_pk_bf16_f32 v{a}, v{a}, v{a+1}
                    v_cvt_pk_bf16_f32 v{a+1}, v{a+2}, v{a+3}
                    buffer_store_dwordx2 {vr(a,2)}, v{vOut}, s[{sO}:{sO+3}], s{sT+2+m} offen offset:{ti*32}""")
        k.stamp(6); k.dump(pWS, sW, kidx, 7)
        k("s_endpgm")
    k(f"s_mov_b32 s{sT+2}, 0\ns_mov_b32 s{sT+3}, {16*1280}") if not qkv else None
    lB = k.lab()
    k(f"s_cmp_ge_u32 s{sW}, 2\ns_cbranch_scc1 {lB}")
    body(0)
    k(f"{lB}:")
    body(1)
    for i in range(4):
        k(f"{lL[i]}:")
        loader(i & 1, i >> 1)
    k(f"L_{name}_end:\ns_endpgm")
    return k.text(), k.desc(NV), NS * ST
```

```python
import sys
from gen_common import *
from gen_gemm64 import gemm64
from gen_gemm128 import gateup
from gen_attn import attn, NWG
if len(sys.argv) > 2 and sys.argv[2] == 'dbg': DBG['on'] = True
hdr = open('cdna_kernels/' + NAME + '.s.ref').read().split("; Override launch")[0]
ks = [("k1_qkv_kernel", gemm64("k1_qkv_kernel", 'qkv', 4, 0), 256, 512),
      ("k2_attn_kernel", attn("k2_attn_kernel"), NWG, 512),
      ("k3_wo_kernel", gemm64("k3_wo_kernel", 'wo', 4, 2), 256, 512),
      ("k4_gateup_kernel", gateup("k4_gateup_kernel", 3), 256, 768),
      ("k5_down_kernel", gemm64("k5_down_kernel", 'down', 4, 4), 256, 512)]
out = hdr
for n, (t, d, lds), g, b in ks: out += f"; @launch kernel={n} grid=({g},1,1) block=({b},1,1) lds={lds}\n"
out += '.amdgcn_target "amdgcn-amd-amdhsa--gfx950"\n.text\n'
for n, (t, d, lds), g, b in ks: out += t
out += '.section .rodata,"a"\n'
for n, (t, d, lds), g, b in ks: out += d
import os, re
STFLAG = os.environ.get('STFLAG', '')
if STFLAG: out = re.sub(r'^(  buffer_store_\w+ .*)$', lambda m: m.group(1) + ' ' + STFLAG, out, flags=re.M)
dst = sys.argv[1] if len(sys.argv) > 1 else 'cdna_kernels/' + NAME + '.s'
open(dst, 'w').write(out)
print("wrote", dst, len(out))
```

```python
from gen_common import *

def gateup(name, NS=3):
    k = Asm(name)
    SA, SB = 1280, 3456
    NST = 10
    A_SZ, B_SZ = 16384, 14336
    ST = A_SZ + 2 * B_SZ
    BSTEP = 64 * SB
    sA, sG, sU, sO, sC = 4, 8, 12, 16, 20
    sW, sRB, sJ, soffA, soffB, sm, sT = 24, 25, 26, 27, 28, 30, 33
    pWS, pG, pU = 40, 42, 44
    sBsel = 56
    vLane, vG, vR16 = 1, 2, 3
    vLd = 4
    vX = 11
    vW0, vW1 = 13, 14
    vT = 16
    vOut, vSum0, vSq0, vSum1, vSq1 = 28, 29, 30, 31, 32
    ONE = 33
    XF = 36
    WF = 52
    ACC = 100
    CS = WF
    NV = 164
    CSL = NS * ST
    def wf(p, t): return WF + (t * 8 if (p == 0 or t < 2) else 32 + (t - 2) * 8)
    k(f"s_cmp_ge_u32 s2, 256\ns_cbranch_scc1 L_{name}_end")
    k.stamp(0)
    k.ldptr(pWS, 'ws')
    k(f"""v_and_b32 v{vLane}, 63, v0
    v_lshrrev_b32 v{vT}, 6, v0
    v_lshrrev_b32 v{vG}, 4, v{vLane}
    v_readfirstlane_b32 s{sW}, v{vT}
    v_and_b32 v{vR16}, 15, v{vLane}
    s_lshr_b32 s{sT}, s2, 3
    s_bfe_u32 s{sRB}, s2, 0x10002
    s_lshl_b32 s{sRB}, s{sRB}, 3
    s_lshr_b32 s{sT+1}, s{sT}, 2
    s_add_u32 s{sRB}, s{sRB}, s{sT+1}
    s_and_b32 s{sJ}, s2, 3
    s_lshl_b32 s{sJ}, s{sJ}, 2
    s_and_b32 s{sT}, s{sT}, 3
    s_add_u32 s{sJ}, s{sJ}, s{sT}""")
    def mk_srds():
        k("s_waitcnt lgkmcnt(0)")
        k.srd(sA, pWS, ACT_BYTES, WS_H); k.srd(sG, pWS, 16 * 10 * 28672, WS_PGU)
        k.srd(sO, pWS, 2048 * 3456, WS_HH); k.srd(sC, pWS, 3456 * 4, WS_CS)
    lL0, lL1 = k.lab(), k.lab()
    k(f"s_cmp_eq_u32 s{sW}, 8\ns_cbranch_scc1 {lL0}\ns_cmp_eq_u32 s{sW}, 9\ns_cbranch_scc1 {lL1}")
    mk_srds()
    k(f"""s_and_b32 s{sT}, s{sW}, 3
    s_lshl_b32 s{sT}, s{sT}, 12
    v_and_b32 v{vT}, 7, v{vR16}
    v_xor_b32 v{vT}, v{vT}, v{vG}
    v_lshlrev_b32 v{vT+1}, 7, v{vR16}
    v_add_u32 v{vT+1}, s{sT}, v{vT+1}
    v_lshl_add_u32 v{vX}, v{vT}, 4, v{vT+1}
    v_xor_b32 v{vT}, 4, v{vT}
    v_lshl_add_u32 v{vX+1}, v{vT}, 4, v{vT+1}""")
    k(f"""v_lshrrev_b32 v{vT}, 2, v{vLane}
    v_and_b32 v{vT}, 3, v{vT}
    v_and_b32 v{vT+1}, 1, v{vG}
    v_lshlrev_b32 v{vT+1}, 2, v{vT+1}
    v_xor_b32 v{vT}, v{vT}, v{vT+1}
    v_lshl_add_u32 v{vT}, v{vG}, 3, v{vT}
    v_xor_b32 v{vT+1}, 4, v{vT}
    v_and_b32 v{vT+2}, 3, v{vLane}
    v_lshlrev_b32 v{vT+2}, 3, v{vT+2}
    v_add_u32 v{vT+2}, {A_SZ}, v{vT+2}
    v_mul_u32_u24 v{vW0}, 224, v{vT}
    v_mul_u32_u24 v{vW1}, 224, v{vT+1}
    v_add_u32 v{vW0}, v{vW0}, v{vT+2}
    v_add_u32 v{vW1}, v{vW1}, v{vT+2}""")
    k(f"""s_lshl_b32 s{sT}, s{sRB}, 7
    s_and_b32 s{sT+1}, s{sW}, 3
    s_lshl_b32 s{sT+1}, s{sT+1}, 5
    s_add_u32 s{sT}, s{sT}, s{sT+1}
    v_add_u32 v{vT}, s{sT}, v{vR16}
    v_mul_u32_u24 v{vOut}, 3456, v{vT}
    s_mul_i32 s{sT}, s{sJ}, 224
    s_lshr_b32 s{sT+1}, s{sW}, 2
    s_lshl_b32 s{sT+1}, s{sT+1}, 7
    s_add_u32 s{sT}, s{sT}, s{sT+1}
    v_lshlrev_b32 v{vT}, 3, v{vG}
    v_add3_u32 v{vOut}, v{vOut}, v{vT}, s{sT}
    v_mov_b32 v{ONE}, 0x3f803f80""")
    for i in range(64): k(f"v_mov_b32 v{ACC+i}, 0")
    for r in (vSum0, vSq0, vSum1, vSq1): k(f"v_mov_b32 v{r}, 0")
    sIss, sSlot, sSt, sD, sSTc, sRd = 46, 47, 48, 49, 50, 51
    def loader(which):
        pcs = []
        if which == 0:
            k(f"""s_lshl_b32 s{sT}, s{sRB}, 7
            s_mul_i32 s{sT}, s{sT}, {SA}
            v_lshrrev_b32 v{vT}, 3, v{vLane}
            v_and_b32 v{vT+1}, 7, v{vLane}
            v_xor_b32 v{vT+1}, v{vT+1}, v{vT}
            v_lshlrev_b32 v{vT+1}, 4, v{vT+1}
            v_mul_u32_u24 v{vT}, {SA}, v{vT}
            v_add3_u32 v{vLd}, v{vT}, v{vT+1}, s{sT}""")
            for i in range(16): pcs.append((vLd, sA, i * 8 * SA, i * 1024))
            step = 128
            k(f"""s_mul_i32 s{sT}, s{sJ}, 448
            v_lshlrev_b32 v{vT}, 4, v{vLane}
            v_add_u32 v{vT}, s{sT}, v{vT}
            v_add_u32 v{vT+1}, {1728*4 - 448}, v{vT}
            v_cmp_lt_u32 vcc, 27, v{vLane}
            v_cndmask_b32 v{vT}, v{vT}, v{vT+1}, vcc
            v_mov_b32 v{vT+1}, 0x100000
            v_cmp_lt_u32 vcc, 55, v{vLane}
            v_cndmask_b32 v{vT}, v{vT}, v{vT+1}, vcc
""")
        else:
            k(f"s_mul_i32 s{sT}, s{sJ}, {10*28672}\nv_lshlrev_b32 v{vLd}, 4, v{vLane}\nv_add_u32 v{vLd}, s{sT}, v{vLd}")
            for i in range(28): pcs.append((vLd, sG, i * 1024, A_SZ + i * 1024))
            step = 28672
        n = len(pcs); srd = pcs[0][1]
        mk_srds()
        if which == 0: k(f"s_mov_b32 m0, {CSL}\ns_nop 0\nbuffer_load_dwordx4 v{vT}, s[{sC}:{sC+3}], 0 offen lds")
        k(f"s_setprio 3\ns_mov_b32 s{soffA}, 0\ns_mov_b32 s{sSlot}, 0\ns_mov_b32 s{sSt}, 0")
        k.stamp(1)
        l0, l1 = k.lab(), k.lab()
        k(f"""{l0}:
        s_cmp_lt_u32 s{sSt}, {NS-1}
        s_cbranch_scc1 {l1}
        s_waitcnt vmcnt({(NS-2)*n})
        s_barrier
        {l1}:""")
        for (v, srd, sa, la) in pcs:
            k(f"s_add_u32 m0, s{sSlot}, {la}\ns_add_u32 s{sT}, s{soffA}, {sa}\nbuffer_load_dwordx4 v{v}, s[{srd}:{srd+3}], s{sT} offen lds")
        k(f"""s_add_u32 s{soffA}, s{soffA}, {step}
        s_add_u32 s{sSlot}, s{sSlot}, {ST}
        s_cmp_eq_u32 s{sSlot}, {NS*ST}
        s_cselect_b32 s{sSlot}, 0, s{sSlot}
        s_add_u32 s{sSt}, s{sSt}, 1
        s_cmp_lt_u32 s{sSt}, {NST}
        s_cbranch_scc1 {l0}""")
        for r in range(NS - 2, -1, -1): k(f"s_waitcnt vmcnt({r*n})\ns_barrier")
        k("s_barrier")
        for i in range(2, 7): k.stamp(i)
        k.dump(pWS, sW, 3, 7)
        k("s_endpgm")

    def body(cls):
        nt = 4 if cls == 0 else 3
        k.stamp(1)
        k(f"s_mov_b32 s{sSt}, 0\ns_mov_b32 s{sD}, 0\ns_mov_b32 s{sSTc}, {ST}\ns_mov_b32 s{sRd}, 0")
        k.stamp(2)
        def reads(kk, p):
            for m in range(2):
                k(f"ds_read_b128 {vr(XF + p*8 + m*4, 4)}, v{vX+kk} offset:{m*2048}")
            for t in range(nt):
                for mat in range(2):
                    b = wf(p, t) + mat * 4
                    off = mat * B_SZ + kk * 32 * 224 + (cls * 4 + t) * 32
                    k(f"ds_read_b64_tr_b16 {vr(b,2)}, v{vW0} offset:{off}\nds_read_b64_tr_b16 {vr(b+2,2)}, v{vW1} offset:{off}")
        def mm(p, tlist):
            for t in tlist:
                for mat in range(2):
                    for m in range(2):
                        a = ACC + ((t * 2 + mat) * 2 + m) * 4
                        k(mfma16(a, wf(p, t) + mat * 4, XF + p * 8 + m * 4, a))
                if cls == 1 and tlist[-1] == 2 and t == 2:
                    for m in range(2):
                        xs = XF + p * 8 + m * 4
                        k(mfma16(STS + m * 4, ONES, xs, STS + m * 4)); k(mfma16(STQ + m * 4, xs, xs, STQ + m * 4))
        nrd = 2 + 4 * nt
        STS, STQ, ONES = ACC + 48, ACC + 56, WF + 24
        if cls == 1:
            for i in range(4): k(f"v_mov_b32 v{ONES+i}, 0x3f803f80")
        k("s_barrier")
        reads(0, 0)
        k(f"s_mov_b32 s{sD}, s{sSTc}\ns_mov_b32 s{sRd}, 1")
        lp = k.lab()
        k(f"{lp}:")
        k(f"s_waitcnt lgkmcnt({nrd - 2 - 8})")
        mm(0, [0, 1])
        k("s_waitcnt lgkmcnt(0)")
        reads(1, 1)
        mm(0, list(range(2, nt)))
        k("s_waitcnt lgkmcnt(0)\ns_barrier")
        mm(1, [0, 1])
        for r in (vX, vX + 1, vW0, vW1): k(f"v_add_u32 v{r}, s{sD}, v{r}")
        reads(0, 0)
        mm(1, list(range(2, nt)))
        k(f"""s_add_u32 s{sSt}, s{sSt}, 1
        s_add_u32 s{sRd}, s{sRd}, 1
        s_cmp_eq_u32 s{sRd}, {NS}
        s_cselect_b32 s{sD}, {-(NS-1)*ST}, s{sSTc}
        s_cselect_b32 s{sRd}, 0, s{sRd}
        s_cmp_lt_u32 s{sSt}, {NST}
        s_cbranch_scc1 {lp}""")
        k("s_waitcnt lgkmcnt(0)\ns_nop 7\ns_nop 7")
        k.stamp(5)
        k(f"v_lshlrev_b32 v{vT+10}, 4, v{vG}\nv_add_u32 v{vT+10}, {CSL}, v{vT+10}")
        for t in range(nt):
            for mat in range(2):
                k(f"ds_read_b128 {vr(CS+t*8+mat*4,4)}, v{vT+10} offset:{mat*448 + cls*256 + t*64}")
        k(f"s_and_b32 s{sT}, s{sW}, 3\ns_lshl_b32 s{sT}, s{sT}, 8\nv_lshlrev_b32 v{vT+4}, 3, v{vR16}\nv_add_u32 v{vT+4}, s{sT}, v{vT+4}")
        if cls == 1:
            stats_from_mfma(k, STS, STQ, vSum0, vSq0, vG, vR16, vT)
            stats_from_mfma(k, STS + 4, STQ + 4, vSum1, vSq1, vG, vR16, vT)
            stats_finish(k, vSum0, vSq0, vT, vT + 1, vT + 6, vT + 7)
            stats_finish(k, vSum1, vSq1, vT, vT + 1, vT + 8, vT + 9)
            k(f"s_barrier\nds_write_b64 v{vT+4}, {vr(vT+6,2)}\nds_write_b64 v{vT+4}, {vr(vT+8,2)} offset:128\ns_waitcnt lgkmcnt(0)\ns_barrier")
        else:
            k(f"s_barrier\ns_barrier\nds_read_b64 {vr(vT+6,2)}, v{vT+4}\nds_read_b64 {vr(vT+8,2)}, v{vT+4} offset:128\ns_waitcnt lgkmcnt(0)")
        mean = [vT + 6, vT + 8]; rstd = [vT + 7, vT + 9]
        k(f"v_mul_f32 v{rstd[0]}, v{rstd[0]}, v{rstd[0]}\nv_mul_f32 v{rstd[1]}, v{rstd[1]}, v{rstd[1]}\ns_mov_b32 s{sT}, {16*3456}")
        k(f"s_mul_i32 s{sT+1}, s{sJ}, 112")
        lfin = k.lab()
        k(f"v_lshl_add_u32 v{vT+11}, v{vG}, 3, v{vOut}")
        def tile(t, m, dst):
            g = ACC + ((t * 2) * 2 + m) * 4; u = ACC + ((t * 2 + 1) * 2 + m) * 4
            for r in range(4):
                k(f"""v_fma_f32 v{g+r}, -v{mean[m]}, v{CS+t*8+r}, v{g+r}
                v_fma_f32 v{u+r}, -v{mean[m]}, v{CS+t*8+4+r}, v{u+r}
                v_mul_f32 v{g+r}, v{g+r}, v{rstd[m]}
                v_mul_f32 v{g+r}, v{g+r}, v{u+r}""")
            k(f"v_cvt_pk_bf16_f32 v{dst}, v{g}, v{g+1}\nv_cvt_pk_bf16_f32 v{dst+1}, v{g+2}, v{g+3}")
        t = 0
        while t < nt:
            so = lambda m: '0' if m == 0 else 's%d' % sT
            if t + 1 < nt:
                lone, lnx = k.lab(), k.lab()
                k(f"s_cmp_gt_u32 s{sT+1}, {1728 - (cls*64 + 16*t + 16)}\ns_cbranch_scc1 {lfin}")
                k(f"s_cmp_gt_u32 s{sT+1}, {1728 - (cls*64 + 16*t + 32)}\ns_cbranch_scc1 {lone}")
                for m in range(2):
                    u = ACC + ((t * 2 + 1) * 2 + m) * 4
                    tile(t + 1, m, XF + m * 4 + 2); tile(t, m, XF + m * 4)
                    pair16(k, XF + m * 4, XF + m * 4 + 2)
                    k(f"buffer_store_dwordx4 {vr(XF + m * 4, 4)}, v{vT+11}, s[{sO}:{sO+3}], {so(m)} offen offset:{t*32}")
                k(f"s_branch {lnx}\n{lone}:")
                for m in range(2):
                    tile(t, m, XF + 8 + m * 2)
                    k(f"buffer_store_dwordx2 {vr(XF + 8 + m * 2, 2)}, v{vOut}, s[{sO}:{sO+3}], {so(m)} offen offset:{t*32}")
                k(f"s_branch {lfin}\n{lnx}:")
                t += 2
            else:
                k(f"s_cmp_gt_u32 s{sT+1}, {1728 - (cls*64 + 16*t + 16)}\ns_cbranch_scc1 {lfin}")
                for m in range(2):
                    tile(t, m, XF + 8 + m * 2)
                    k(f"buffer_store_dwordx2 {vr(XF + 8 + m * 2, 2)}, v{vOut}, s[{sO}:{sO+3}], {so(m)} offen offset:{t*32}")
                t += 1
        k(f"{lfin}:")
        k.stamp(6); k.dump(pWS, sW, 3, 7)
        k("s_endpgm")
    lB = k.lab()
    k(f"s_cmp_ge_u32 s{sW}, 4\ns_cbranch_scc1 {lB}")
    body(0)
    k(f"{lB}:")
    body(1)
    k(f"{lL0}:")
    loader(0)
    k(f"{lL1}:")
    loader(1)
    k(f"L_{name}_end:\ns_endpgm")
    return k.text(), k.desc(NV), NS * ST + 1024
```

```python
from gen_common import *
import math

def gemm64(name, mode, NS, kidx=0):
    k = Asm(name)
    qkv = mode == 'qkv'
    KD = 1728 if mode == 'down' else 640
    SA = KD * 2
    SB = 1280
    NST = (KD + 127) // 128
    A_SZ, B_SZ, E_SZ = 16384, 20480, (4096 if qkv else 0)
    ST = A_SZ + B_SZ + E_SZ
    LPS = 4 + 5 + (1 if qkv else 0)
    What = dict(qkv='wq', wo='wo', down='wd')[mode]
    Wbytes = KD * SB
    Abytes = 2048 * 3456 if mode == 'down' else ACT_BYTES
    assert NS == 4
    sA, sB, sE, sO, sO2, sR = 4, 8, 12, 16, 20, 12
    sW, sRB, sJ, soffA, soffB, soffE, smA, smB, smE, sT = 24, 25, 26, 27, 28, 29, 30, 31, 32, 33
    pX, pW, pWS, pK, pV, pOut = 40, 42, 44, 46, 48, 50
    sIss, sSlot, sSt, sD = 54, 55, 56, 57
    BSTEP = 128 * SB
    vLane, vG, vR16 = 1, 2, 3
    vAo = 4
    vBo = 8
    vEo = 13
    vX = 14
    vW0, vW1, vE0, vE1 = 18, 19, 20, 21
    vT = 22
    XF = 32
    WF = 48
    ACC = 72
    CS = 96
    ONES = 108
    vSum, vSq = 112, 113
    RES = 116
    vOut = 128
    vMean, vRstd = 129, 131
    STS, STQ = 136, 140
    NV = 144
    k(f"s_cmp_ge_u32 s2, 256\ns_cbranch_scc1 L_{name}_end")
    k.stamp(0)
    k.ldptr(pWS, 'ws')
    if qkv: k.ldptr(pW, What)
    if qkv: k.ldptr(pX, 'x'); k.ldptr(pK, 'wk'); k.ldptr(pV, 'wv')
    if mode == 'wo': k.ldptr(pX, 'x')
    if mode == 'down': k.ldptr(pOut, 'out')
    k(f"""v_and_b32 v{vLane}, 63, v0
    v_lshrrev_b32 v{vT}, 6, v0
    v_lshrrev_b32 v{vG}, 4, v{vLane}
    v_readfirstlane_b32 s{sW}, v{vT}
    v_and_b32 v{vR16}, 15, v{vLane}
    s_and_b32 s{sT}, s2, 7
    s_lshr_b32 s{sJ}, s2, 3
    s_lshl_b32 s{sRB}, s{sT}, 2
    s_lshr_b32 s{sT}, s{sJ}, 3
    s_add_u32 s{sRB}, s{sRB}, s{sT}
    s_and_b32 s{sJ}, s{sJ}, 7""")
    def mk_srds():
        k("s_waitcnt lgkmcnt(0)")
        if qkv:
            k.srd(sA, pX, ACT_BYTES); k.srd(sB, pW, Wbytes)
            k(f"s_bitcmp1_b32 s{sJ}, 1\ns_cselect_b32 s{sE}, s{pV}, s{pK}\ns_cselect_b32 s{sE+1}, s{pV+1}, s{pK+1}\ns_cmp_lt_u32 s{sJ}, 4\ns_cselect_b32 s{sE+2}, 25600, 0\ns_mov_b32 s{sE+3}, 0x20000")
            k.srd(sO, pWS, ACT_BYTES, WS_Q); k.srd(sO2, pWS, 0x40000 + 512, WS_KV)
        elif mode == 'wo':
            k.srd(sA, pWS, ACT_BYTES, WS_O); k.srd(sB, pWS, 8*NST*20480, WS_PWO); k.srd(sR, pX, ACT_BYTES); k.srd(sO, pWS, ACT_BYTES, WS_H)
        else:
            k.srd(sA, pWS, 2048 * 3456, WS_HH); k.srd(sB, pWS, 8*NST*20480, WS_PWD); k.srd(sR, pWS, ACT_BYTES, WS_H); k.srd(sO, pOut, ACT_BYTES)

        sIss, sSlot, sSt, sD = 54, 55, 56, 57
    lL0, lL1 = k.lab(), k.lab()
    k(f"s_cmp_eq_u32 s{sW}, 4\ns_cbranch_scc1 {lL0}\ns_cmp_eq_u32 s{sW}, 5\ns_cbranch_scc1 {lL1}")
    mk_srds()
    k(f"""s_and_b32 s{sT}, s{sW}, 1
    s_lshl_b32 s{sT}, s{sT}, 13
    v_xor_b32 v{vT}, v{vG}, v{vR16}
    v_lshlrev_b32 v{vT+1}, 8, v{vR16}
    v_add_u32 v{vT+1}, s{sT}, v{vT+1}""")
    for kk in range(4):
        k(f"""v_xor_b32 v{vT+2}, {4*kk}, v{vT}
        v_lshl_add_u32 v{vX+kk}, v{vT+2}, 4, v{vT+1}""")
    k(f"""v_lshrrev_b32 v{vT}, 2, v{vLane}
        v_and_b32 v{vT}, 3, v{vT}
        v_and_b32 v{vT+1}, 1, v{vG}
        v_lshlrev_b32 v{vT+1}, 2, v{vT+1}
        v_xor_b32 v{vT}, v{vT}, v{vT+1}
        v_lshl_add_u32 v{vT}, v{vG}, 3, v{vT}
        v_xor_b32 v{vT+1}, 4, v{vT}
        v_and_b32 v{vT+2}, 3, v{vLane}
        v_lshlrev_b32 v{vT+2}, 3, v{vT+2}
        v_mul_u32_u24 v{vW0}, 160, v{vT}
        v_mul_u32_u24 v{vW1}, 160, v{vT+1}
        v_add3_u32 v{vW0}, v{vW0}, v{vT+2}, {A_SZ//1024}*1024-{A_SZ//1024}*1024
        v_add_u32 v{vW1}, v{vW1}, v{vT+2}
        v_add_u32 v{vW0}, {A_SZ}, v{vW0}
        v_add_u32 v{vW1}, {A_SZ}, v{vW1}""".replace(f", {A_SZ//1024}*1024-{A_SZ//1024}*1024", ", 0"))
    if qkv:
        k(f"""v_lshl_add_u32 v{vE0}, v{vT}, 5, v{vT+2}
        v_lshl_add_u32 v{vE1}, v{vT+1}, 5, v{vT+2}
        v_add_u32 v{vE0}, {A_SZ+B_SZ}, v{vE0}
        v_add_u32 v{vE1}, {A_SZ+B_SZ}, v{vE1}""")
    k(f"""s_lshl_b32 s{sT}, s{sRB}, 6
    s_and_b32 s{sT+1}, s{sW}, 1
    s_lshl_b32 s{sT+1}, s{sT+1}, 5
    s_add_u32 s{sT}, s{sT}, s{sT+1}
    v_add_u32 v{vT}, s{sT}, v{vR16}
    v_mul_u32_u24 v{vOut}, 1280, v{vT}
    s_mul_i32 s{sT}, s{sJ}, 160
    s_lshr_b32 s{sT+1}, s{sW}, 1
    s_mul_i32 s{sT+1}, s{sT+1}, 96
    s_add_u32 s{sT}, s{sT}, s{sT+1}
    v_lshlrev_b32 v{vT}, 3, v{vG}
    v_add3_u32 v{vOut}, v{vOut}, v{vT}, s{sT}""")
    for i in range(24): k(f"v_mov_b32 v{ACC+i}, 0")
    if qkv:
        for i in range(12): k(f"v_mov_b32 v{CS+i}, 0")
        for i in range(4): k(f"v_mov_b32 v{ONES+i}, 0x3f803f80")
        for i in range(8): k(f"v_mov_b32 v{STS+i}, 0")
    def loader(which):
        pcs = []
        if which == 0:
            k(f"s_lshl_b32 s{sT}, s{sRB}, 6\ns_mul_i32 s{sT}, s{sT}, {SA}")
            for i in range(4):
                k(f"""v_add_u32 v{vT}, {4*i}, v{vG}
                v_xor_b32 v{vT+1}, v{vT}, v{vR16}
                v_lshlrev_b32 v{vT+1}, 4, v{vT+1}
                v_mul_u32_u24 v{vT}, {SA}, v{vT}
                v_add3_u32 v{vAo+i}, v{vT}, v{vT+1}, s{sT}""")
            for w in range(4):
                for i in range(4): pcs.append((vAo + i, sA, soffA, w * 16 * SA, w * 4096 + i * 1024))
            step = [(soffA, 256)]
            if qkv:
                k(f"""v_lshrrev_b32 v{vT}, 1, v{vLane}
                v_lshrrev_b32 v{vT+1}, 1, v{vT}
                v_and_b32 v{vT+1}, 4, v{vT+1}
                v_xor_b32 v{vT}, v{vT}, v{vT+1}
                v_mul_u32_u24 v{vT}, 40, v{vT}
                v_and_b32 v{vT+1}, 1, v{vLane}
                v_lshlrev_b32 v{vT+1}, 4, v{vT+1}
                s_and_b32 s{sT}, s{sJ}, 1
                s_lshl_b32 s{sT}, s{sT}, 5
                v_add3_u32 v{vEo}, v{vT}, v{vT+1}, s{sT}""")
                for w in range(4): pcs.append((vEo, sE, soffE, w * 32 * 40, A_SZ + B_SZ + w * 1024))
                step.append((soffE, 128 * 40))
        else:
            if qkv:
                k(f"s_mul_i32 s{sT}, s{sJ}, 160")
                wofs(k, vBo, vLane, vT, sT + 1, 5, 10, 6554, SB, f"s{sT}")
                wstep = 32 * SB; step = [(soffB, 128 * SB)]
            else:
                k(f"s_mul_i32 s{sT}, s{sJ}, {NST*20480}\nv_lshlrev_b32 v{vT}, 4, v{vLane}\nv_add_u32 v{vBo}, s{sT}, v{vT}")
                for i in range(1, 5): k(f"v_add_u32 v{vBo+i}, {1024*i}, v{vBo}")
                wstep = 5120; step = [(soffB, 20480)]
            for w in range(4):
                for i in range(5): pcs.append((vBo + i, sB, soffB, w * wstep, A_SZ + w * 5120 + i * 1024))
        n = len(pcs)
        mk_srds()
        def issue():
            for (v, srd, so, sa, la) in pcs:
                k(f"s_add_u32 m0, s{sSlot}, {la}\ns_add_u32 s{sT}, s{so}, {sa}\nbuffer_load_dwordx4 v{v}, s[{srd}:{srd+3}], s{sT} offen lds")
            for r, d in step: k(f"s_add_u32 s{r}, s{r}, {d}")
            k(f"s_add_u32 s{sSlot}, s{sSlot}, {ST}\ns_cmp_eq_u32 s{sSlot}, {NS*ST}\ns_cselect_b32 s{sSlot}, 0, s{sSlot}")
        k(f"s_setprio 3\ns_mov_b32 s{soffA}, 0\ns_mov_b32 s{soffB}, 0\ns_mov_b32 s{soffE}, 0\ns_mov_b32 s{sSlot}, 0\ns_mov_b32 s{sSt}, 0")
        k.stamp(1)
        l0, l1, l2 = k.lab(), k.lab(), k.lab()
        k(f"""{l0}:
        s_cmp_lt_u32 s{sSt}, {NS-1}
        s_cbranch_scc1 {l1}
        s_waitcnt vmcnt({(NS-2)*n})
        s_barrier
        {l1}:""")
        issue()
        k(f"s_add_u32 s{sSt}, s{sSt}, 1\ns_cmp_lt_u32 s{sSt}, {NST}\ns_cbranch_scc1 {l0}")
        for r in range(NS - 2, -1, -1): k(f"s_waitcnt vmcnt({r*n})\ns_barrier")
        for i in range(2, 7): k.stamp(i)
        k.dump(pWS, sW, kidx, 7)
        k("s_endpgm")

    def body(cls):
        tiles = [('B', 0), ('B', 1), ('B', 2)] if cls == 0 else ([('B', 3), ('B', 4)] + ([('E', 0)] if qkv else []))
        nt = len(tiles)
        nres = 0
        k.stamp(1)
        k(f"s_mov_b32 s{sSt}, 0\ns_mov_b32 s{sD}, 0\ns_mov_b32 s59, {ST}")
        k.stamp(2)
        def resload():
            for t in range(nt):
                for m in range(2):
                    k(f"buffer_load_dwordx2 {vr(RES + (t*2+m)*2, 2)}, v{vOut}, s[{sR}:{sR+3}], s{sT+2+m} offen offset:{t*32}")
        def reads(kk, p):
            for m in range(2):
                k(f"ds_read_b128 {vr(XF + p*8 + m*4, 4)}, v{vX+kk} offset:{m*4096}")
            for ti, (src, t) in enumerate(tiles):
                b = WF + p * 12 + ti * 4
                if src == 'B':
                    off = kk * 5120 + t * 32
                    k(f"ds_read_b64_tr_b16 {vr(b,2)}, v{vW0} offset:{off}\nds_read_b64_tr_b16 {vr(b+2,2)}, v{vW1} offset:{off}")
                else:
                    off = kk * 1024
                    k(f"ds_read_b64_tr_b16 {vr(b,2)}, v{vE0} offset:{off}\nds_read_b64_tr_b16 {vr(b+2,2)}, v{vE1} offset:{off}")
        nrd = 2 + 2 * nt
        def stage(nkk, do_issue):
            k("s_barrier")
            regs = [vX + i for i in range(4)] + [vW0, vW1] + ([vE0, vE1] if qkv else [])
            for r in regs: k(f"v_add_u32 v{r}, s{sD}, v{r}")
            reads(0, 0)
            for kk in range(nkk):
                p = kk & 1
                if kk < nkk - 1:
                    reads(kk + 1, 1 - p); k(f"s_waitcnt lgkmcnt({nrd})")
                else:
                    k("s_waitcnt lgkmcnt(0)")
                for ti in range(nt):
                    for m in range(2):
                        a = ACC + (ti * 2 + m) * 4
                        k(mfma16(a, WF + p * 12 + ti * 4, XF + p * 8 + m * 4, a))
                    if qkv:
                        k(mfma16(CS + ti * 4, WF + p * 12 + ti * 4, ONES, CS + ti * 4))
                        if ti == nt - 1:
                            xs = XF + p * 8 + cls * 4
                            k(mfma16(STS, ONES, xs, STS)); k(mfma16(STQ, xs, xs, STQ))
        NFULL = KD // 128
        lp = k.lab()
        k(f"{lp}:")
        stage(4, True)
        if not qkv:
            lsk = k.lab()
            k(f"s_cmp_eq_u32 s{sSt}, 1\ns_cbranch_scc0 {lsk}")
            resload()
            k(f"{lsk}:")
        k(f"""s_add_u32 s{sSt}, s{sSt}, 1
        s_and_b32 s{sT}, s{sSt}, {NS-1}
        s_cmp_eq_u32 s{sT}, 0
        s_cselect_b32 s{sD}, {-(NS-1)*ST}, s59
        s_cmp_lt_u32 s{sSt}, {NFULL}
        s_cbranch_scc1 {lp}""")
        if NST > NFULL: stage((KD - NFULL * 128) // 32, False)
        k("s_waitcnt vmcnt(0)")
        k("s_nop 7\ns_nop 7")
        k.stamp(5)
        if qkv:
            stats_from_mfma(k, STS, STQ, vSum, vSq, vG, vR16, vT)
            stats_finish(k, vSum, vSq, vT, vT + 1, vT + 2, vT + 3)
            k(f"""s_and_b32 s{sT}, s{sW}, 1
            s_lshl_b32 s{sT}, s{sT}, 8
            v_lshlrev_b32 v{vT+4}, 3, v{vR16}
            v_add_u32 v{vT+4}, s{sT}, v{vT+4}
            s_barrier
            ds_write_b64 v{vT+4}, {vr(vT+2,2)} offset:{cls*128}
            s_waitcnt lgkmcnt(0)
            s_barrier
            ds_read_b64 {vr(vT+6,2)}, v{vT+4}
            ds_read_b64 {vr(vT+8,2)}, v{vT+4} offset:128
            s_waitcnt lgkmcnt(0)""")
            mean = [vT + 6, vT + 8]; rstd = [vT + 7, vT + 9]
            C = (20 ** -0.5) * math.log2(math.e)
            k(f"v_mul_f32 v{vMean}, {f2h(C)}, v{rstd[0]}\nv_mul_f32 v{vMean+1}, {f2h(C)}, v{rstd[1]}")
            for ti, (src, t) in enumerate(tiles):
                for m in range(2):
                    a = ACC + (ti * 2 + m) * 4
                    sc = (vMean + m) if src == 'B' else rstd[m]
                    for r in range(4):
                        k(f"v_fma_f32 v{a+r}, -v{mean[m]}, v{CS+ti*4+r}, v{a+r}\nv_mul_f32 v{a+r}, v{a+r}, v{sc}")
                if src == 'B':
                    for m in range(2):
                        a = ACC + (ti * 2 + m) * 4
                        k(f"v_cvt_pk_bf16_f32 v{a}, v{a}, v{a+1}\nv_cvt_pk_bf16_f32 v{a+1}, v{a+2}, v{a+3}")
                        k(f"s_mov_b32 s{sT}, {m*16*1280}\nbuffer_store_dwordx2 {vr(a,2)}, v{vOut}, s[{sO}:{sO+3}], s{sT} offen offset:{(t - 3*cls)*32}")
            if cls == 1:
                e0, e1 = ACC + 4 * 4, ACC + 5 * 4
                lk, lv, lend = k.lab(), k.lab(), k.lab()
                k(f"s_cmp_ge_u32 s{sJ}, 4\ns_cbranch_scc1 {lend}")
                k(f"""s_lshl_b32 s{sT}, s{sRB}, 1
                s_and_b32 s{sT+1}, s{sW}, 1
                s_add_u32 s{sT}, s{sT}, s{sT+1}
                s_lshl_b32 s{sT+2}, s{sT}, 12
                s_bitcmp1_b32 s{sJ}, 1
                s_cbranch_scc1 {lv}""")
                k(f"""s_and_b32 s{sT+1}, s{sJ}, 1
                s_lshl_b32 s{sT+3}, s{sT+1}, 10
                s_add_u32 s{sT+2}, s{sT+2}, s{sT+3}
                v_lshrrev_b32 v{vT}, 1, v{vG}
                v_lshlrev_b32 v{vT}, 9, v{vT}
                v_lshl_add_u32 v{vT}, v{vR16}, 4, v{vT}
                v_and_b32 v{vT+1}, 1, v{vG}
                v_lshl_add_u32 v{vT}, v{vT+1}, 3, v{vT}
                v_add_u32 v{vT}, s{sT+2}, v{vT}
                v_cmp_eq_u32 vcc, 0, v{vG}
                v_cmp_eq_u32 s[52:53], 1, v{vG}
                s_cmp_eq_u32 s{sT+1}, 0
                s_cselect_b64 vcc, -1, vcc
                s_cselect_b64 s[52:53], 0, s[52:53]
                v_mov_b32 v{vT+2}, 0""")
                for m, e in enumerate((e0, e1)):
                    k(f"""v_cvt_pk_bf16_f32 v{e}, v{e}, v{e+1}
                    v_cvt_pk_bf16_f32 v{e+1}, v{e+2}, v{e+3}
                    v_cndmask_b32 v{e}, 0, v{e}, vcc
                    v_cndmask_b32 v{e+1}, 0, v{e+1}, vcc
                    v_dot2_f32_bf16 v{e+2}, v{e}, v{e}, v{vT+2}
                    v_dot2_f32_bf16 v{e+2}, v{e+1}, v{e+1}, v{e+2}
                    v_mov_b32 v{vT+3}, 0x3f803f80
                    v_mov_b32 v{vT+4}, 0x00003f80
                    v_cndmask_b32 v{e}, v{e}, v{vT+3}, s[52:53]
                    v_cndmask_b32 v{e+1}, v{e+1}, v{vT+4}, s[52:53]
                    buffer_store_dwordx2 {vr(e,2)}, v{vT}, s[{sO2}:{sO2+3}], 0 offen offset:{m*256}""")
                    k.xsum(e + 2, vT + 5, vT + 6)
                k(f"v_max_f32 v{e0+2}, v{e0+2}, v{e1+2}")
                for sh in (8, 4, 2, 1):
                    k(f"s_nop 1\nv_max_f32_dpp v{e0+2}, v{e0+2}, v{e0+2} row_ror:{sh} row_mask:0xf bank_mask:0xf")
                k(f"""s_lshl_b32 s{sT+1}, s{sT+1}, 6
                s_add_u32 s{sT}, s{sT}, s{sT+1}
                s_lshl_b32 s{sT}, s{sT}, 2
                s_add_u32 s{sT}, s{sT}, 0x40000
                v_mov_b32 v{vT}, s{sT}
                v_cmp_eq_u32 vcc, 0, v{vLane}
                s_and_saveexec_b64 s[52:53], vcc
                buffer_store_dword v{e0+2}, v{vT}, s[{sO2}:{sO2+3}], 0 offen
                s_mov_b64 exec, s[52:53]
                s_branch {lend}
                {lv}:""")
                k(f"""s_and_b32 s{sT+1}, s{sJ}, 1
                s_lshl_b32 s{sT+3}, s{sT+1}, 8
                s_add_u32 s{sT+2}, s{sT+2}, s{sT+3}
                s_add_u32 s{sT+2}, s{sT+2}, 2048
                v_lshlrev_b32 v{vT}, 6, v{vG}
                v_bfe_u32 v{vT+1}, v{vR16}, 2, 1
                v_lshl_add_u32 v{vT}, v{vT+1}, 9, v{vT}
                v_and_b32 v{vT+1}, 3, v{vR16}
                v_lshl_add_u32 v{vT}, v{vT+1}, 1, v{vT}
                v_lshrrev_b32 v{vT+1}, 3, v{vR16}
                v_lshl_add_u32 v{vT}, v{vT+1}, 3, v{vT}
                v_add_u32 v{vT}, s{sT+2}, v{vT}
                v_cmp_eq_u32 vcc, 0, v{vG}
                v_cmp_eq_u32 s[52:53], 1, v{vG}
                s_cmp_eq_u32 s{sT+1}, 0
                s_cselect_b64 vcc, -1, vcc
                s_cselect_b64 s[52:53], 0, s[52:53]
                v_mov_b32 v{vT+3}, 0x3f80""")
                for m, e in enumerate((e0, e1)):
                    k(f"""v_cvt_pk_bf16_f32 v{e}, v{e}, v{e+1}
                    v_cvt_pk_bf16_f32 v{e+1}, v{e+2}, v{e+3}
                    v_cndmask_b32 v{e}, 0, v{e}, vcc
                    v_cndmask_b32 v{e+1}, 0, v{e+1}, vcc
                    v_cndmask_b32 v{e}, v{e}, v{vT+3}, s[52:53]
                    buffer_store_short v{e}, v{vT}, s[{sO2}:{sO2+3}], 0 offen offset:{m*1024}
                    buffer_store_short_d16_hi v{e}, v{vT}, s[{sO2}:{sO2+3}], 0 offen offset:{m*1024+16}
                    buffer_store_short v{e+1}, v{vT}, s[{sO2}:{sO2+3}], 0 offen offset:{m*1024+32}
                    buffer_store_short_d16_hi v{e+1}, v{vT}, s[{sO2}:{sO2+3}], 0 offen offset:{m*1024+48}""")
                k(f"{lend}:")
        else:
            for ti in range(nt):
                for m in range(2):
                    a = ACC + (ti * 2 + m) * 4; r = RES + (ti * 2 + m) * 2
                    k(f"""v_lshlrev_b32 v{vT}, 16, v{r}
                    v_and_b32 v{vT+1}, 0xffff0000, v{r}
                    v_lshlrev_b32 v{vT+2}, 16, v{r+1}
                    v_and_b32 v{vT+3}, 0xffff0000, v{r+1}
                    v_add_f32 v{a}, v{a}, v{vT}
                    v_add_f32 v{a+1}, v{a+1}, v{vT+1}
                    v_add_f32 v{a+2}, v{a+2}, v{vT+2}
                    v_add_f32 v{a+3}, v{a+3}, v{vT+3}
                    v_cvt_pk_bf16_f32 v{a}, v{a}, v{a+1}
                    v_cvt_pk_bf16_f32 v{a+1}, v{a+2}, v{a+3}
                    buffer_store_dwordx2 {vr(a,2)}, v{vOut}, s[{sO}:{sO+3}], s{sT+2+m} offen offset:{ti*32}""")
        k.stamp(6); k.dump(pWS, sW, kidx, 7)
        k("s_endpgm")
    k(f"s_mov_b32 s{sT+2}, 0\ns_mov_b32 s{sT+3}, {16*1280}") if not qkv else None
    lB = k.lab()
    k(f"s_cmp_ge_u32 s{sW}, 2\ns_cbranch_scc1 {lB}")
    body(0)
    k(f"{lB}:")
    body(1)
    k(f"{lL0}:")
    loader(0)
    k(f"{lL1}:")
    loader(1)
    k(f"L_{name}_end:\ns_endpgm")
    return k.text(), k.desc(NV), NS * ST
```

```python
import sys
from gen_common import *
from gen_gemm64 import gemm64
from gen_gemm128 import gateup
from gen_attn import attn, NWG
if len(sys.argv) > 2 and sys.argv[2] == 'dbg': DBG['on'] = True
hdr = open('cdna_kernels/' + NAME + '.s.ref').read().split("; Override launch")[0]
ks = [("k1_qkv_kernel", gemm64("k1_qkv_kernel", 'qkv', 4, 0), 256, 384),
      ("k2_attn_kernel", attn("k2_attn_kernel"), NWG, 512),
      ("k3_wo_kernel", gemm64("k3_wo_kernel", 'wo', 4, 2), 256, 384),
      ("k4_gateup_kernel", gateup("k4_gateup_kernel", 3), 256, 640),
      ("k5_down_kernel", gemm64("k5_down_kernel", 'down', 4, 4), 256, 384)]
out = hdr
for n, (t, d, lds), g, b in ks: out += f"; @launch kernel={n} grid=({g},1,1) block=({b},1,1) lds={lds}\n"
out += '.amdgcn_target "amdgcn-amd-amdhsa--gfx950"\n.text\n'
for n, (t, d, lds), g, b in ks: out += t
out += '.section .rodata,"a"\n'
for n, (t, d, lds), g, b in ks: out += d
import os, re
STFLAG = os.environ.get('STFLAG', '')
if STFLAG: out = re.sub(r'^(  buffer_store_\w+ .*)$', lambda m: m.group(1) + ' ' + STFLAG, out, flags=re.M)
dst = sys.argv[1] if len(sys.argv) > 1 else 'cdna_kernels/' + NAME + '.s'
open(dst, 'w').write(out)
print("wrote", dst, len(out))
```
